```python
import torch

def _softmax(x, axis=-1):
    return torch.softmax(x, dim=axis)
def _gelu(x):
    return torch.nn.functional.gelu(x, approximate="tanh")
def _silu(x):
    return torch.nn.functional.silu(x)
def _sigmoid(x):
    return torch.sigmoid(x)
def _layernorm(x, axis=-1, eps=1e-5):
    m = x.mean(dim=axis, keepdim=True)
    v = x.var(dim=axis, keepdim=True, unbiased=False)
    return (x - m) / torch.sqrt(v + eps)
def _scatter_add(tgt, idx, src, axis=0):
    return tgt.clone().index_add_(axis, idx, src)
def _segment_sum(src, seg, n):
    out = torch.zeros((n,) + src.shape[1:], dtype=src.dtype)
    return out.index_add_(0, seg, src)
def _pad(x, pw):
    flat = tuple(v for pair in reversed(pw) for v in pair)
    return torch.nn.functional.pad(x, flat)

kernel_name = 'sequential_preLN__sliding_block__mixer_s_mlp__prompt'

def setup_inputs():

    _w = (lambda a: (lambda t: t.to(torch.bfloat16) if t.is_floating_point() else t)(torch.as_tensor(a)))
    def _A_setup():
        B, S, D = 1, 2048, 512
        return {
            "x": _w((lambda *s: torch.randn(*s, dtype=torch.bfloat16) * 0.05)(B, S, D)),
            "wqkv": _w((lambda *s: torch.randn(*s, dtype=torch.bfloat16) * 0.05)(D, 3 * D)),
            "wo": _w((lambda *s: torch.randn(*s, dtype=torch.bfloat16) * 0.05)(D, D)),
        }
    _A_in = _A_setup()

    def _B_setup():
        B, S, D, F = 1, 2048, 512, 1792
        return {
            "x":  _w((lambda *s: torch.randn(*s, dtype=torch.bfloat16) * 0.05)(B, S, D)),
            "w1": _w((lambda *s: torch.randn(*s, dtype=torch.bfloat16) * 3.2)(D, D) * (D ** -0.5)),
            "w2": _w((lambda *s: torch.randn(*s, dtype=torch.bfloat16) * 3.2)(D, D) * (D ** -0.5)),
            "w3": _w((lambda *s: torch.randn(*s, dtype=torch.bfloat16) * 3.2)(D, F) * (D ** -0.5)),
            "w4": _w((lambda *s: torch.randn(*s, dtype=torch.bfloat16) * 3.2)(F, D) * (F ** -0.5)),
        }
    _B_in = _B_setup()

    return {
        "A_x": _A_in["x"],
        "A_wqkv": _A_in["wqkv"],
        "A_wo": _A_in["wo"],
        "B_x": _B_in["x"],
        "B_w1": _B_in["w1"],
        "B_w2": _B_in["w2"],
        "B_w3": _B_in["w3"],
        "B_w4": _B_in["w4"],
    }

def reference(A_x, A_wqkv, A_wo, B_x, B_w1, B_w2, B_w3, B_w4):
    def _A_ref(x, wqkv, wo):
        B, S, D = x.shape
        H = 32; Dh = D // H; W = 256
        qkv = (lambda x, *d: x.permute(*d))((x @ wqkv).reshape(B, S, 3, H, Dh), 2, 0, 3, 1, 4)
        q, k, v = qkv[0], qkv[1], qkv[2]
        scores = torch.einsum("bhqd,bhkd->bhqk", q, k) * (Dh ** -0.5)
        idx = torch.arange(S)
        mask = (idx[:, None] - idx[None, :] >= 0) & (idx[:, None] - idx[None, :] < W)
        scores = torch.where(mask[None, None], scores, -1e9)
        p = _softmax(scores, axis=-1)
        o = torch.einsum("bhqk,bhkd->bhqd", p, v)
        return (lambda x, *d: x.permute(*d))(o, 0, 2, 1, 3).reshape(B, S, D) @ wo

    def _B_ref(x, w1, w2, w3, w4):
        B, S, D = x.shape
        h = _gelu(_layernorm(x, axis=-1) @ w1)
        c = D // 4
        g0 = _pad(h[:, :, 0*c:1*c], ((0, 0), (1, 0), (0, 0)))[:, :S, :]
        g1 = _pad(h[:, :, 1*c:2*c], ((0, 0), (0, 1), (0, 0)))[:, 1:, :]
        g2 = _pad(h[:, :, 2*c:3*c], ((0, 0), (2, 0), (0, 0)))[:, :S, :]
        g3 = _pad(h[:, :, 3*c:   ], ((0, 0), (0, 2), (0, 0)))[:, 2:, :]
        hs = torch.concatenate([g0, g1, g2, g3], axis=-1) @ w2
        x1 = x + hs
        h2 = _gelu(_layernorm(x1, axis=-1) @ w3) @ w4
        return x1 + h2

    x = A_x
    h = x + _A_ref(_layernorm(x, axis=-1), A_wqkv, A_wo)
    h2 = h + _B_ref(_layernorm(h, axis=-1), B_w1, B_w2, B_w3, B_w4)
    return h2
```

```python
import re

REG_RE = re.compile(r'^(-?)(abs\()?([vas])(?:(\d+)|\[(\d+):(\d+)\])\)?$')
SPECIAL = {'vcc': [('s', 'vcc_lo'), ('s', 'vcc_hi')], 'vcc_lo': [('s', 'vcc_lo')], 'vcc_hi': [('s', 'vcc_hi')],
           'exec': [('s', 'exec_lo'), ('s', 'exec_hi')], 'exec_lo': [('s', 'exec_lo')], 'exec_hi': [('s', 'exec_hi')],
           'm0': [('s', 'm0')]}
TRANS = ('v_exp_f32', 'v_log_f32', 'v_rcp_f32', 'v_rsq_f32', 'v_sqrt_f32', 'v_sin_f32', 'v_cos_f32')


def regs_of(tok):
    tok = tok.strip()
    if tok.startswith('|') and tok.endswith('|'):
        tok = tok[1:-1]
    if tok.startswith('-|') and tok.endswith('|'):
        tok = tok[2:-1]
    if tok in SPECIAL:
        return list(SPECIAL[tok])
    m = REG_RE.match(tok)
    if not m:
        return []
    k = m.group(3)
    if m.group(4) is not None:
        return [(k, int(m.group(4)))]
    return [(k, i) for i in range(int(m.group(5)), int(m.group(6)) + 1)]


def split_ops(s):
    out, depth, cur = [], 0, ''
    for ch in s:
        if ch in '[(':
            depth += 1
        if ch in '])':
            depth -= 1
        if ch == ',' and depth == 0:
            out.append(cur.strip())
            cur = ''
        else:
            cur += ch
    if cur.strip():
        out.append(cur.strip())
    return out


class Ins:
    def __init__(self, text, tag=None, kind='ins'):
        self.text = text
        self.tag = tag
        self.kind = kind
        self.pre = []
        self.rd = set()
        self.wr = set()
        self.cls = None
        self.passes = 0
        if kind == 'ins':
            self.parse()

    def parse(self):
        t = self.text.split(';')[0].strip()
        parts = t.split(None, 1)
        op = parts[0]
        self.op = op
        rest = parts[1] if len(parts) > 1 else ''
        ops = split_ops(rest)
        mods = ''
        if ops:
            last = ops[-1].split(None, 1)
            if len(last) > 1:
                ops[-1] = last[0]
                mods = last[1]
        self.ops = ops
        self.mods = mods
        R = [regs_of(o) for o in ops]
        rd, wr = set(), set()
        base = re.sub(r'_(e32|e64|dpp|sdwa)$', '', op)
        self.base = base
        self.dpp = any(k in mods for k in ('row_', 'quad_perm', 'wave_', 'bcast')) or op.endswith('_dpp')
        self.srcc = set()
        self.srcab = set()
        self.sdata = set()
        self.wide_store = False
        self.branch = None
        if base.startswith('v_mfma'):
            self.cls = 'mfma'
            self.passes = 8 if '32x32' in base else 4
            wr |= set(R[0])
            self.srcab = set(R[1]) | set(R[2])
            self.srcc = set(R[3])
            rd |= self.srcab | self.srcc
            self.dkey = (ops[0], base)
            self.ckey = (ops[3], base)
        elif base.startswith('v_cmp'):
            self.cls = 'valu'
            wr |= set(R[0])
            for r in R[1:]:
                rd |= set(r)
        elif base in ('v_readfirstlane_b32', 'v_readlane_b32'):
            self.cls = 'valu'
            wr |= set(R[0])
            for r in R[1:]:
                rd |= set(r)
        elif base.startswith('v_permlane') and 'swap' in base:
            self.cls = 'valu'
            wr |= set(R[0]) | set(R[1])
            rd |= set(R[0]) | set(R[1])
        elif base in ('v_add_co_u32', 'v_sub_co_u32', 'v_addc_co_u32', 'v_subb_co_u32', 'v_mad_u64_u32'):
            self.cls = 'valu'
            wr |= set(R[0]) | set(R[1])
            for r in R[2:]:
                rd |= set(r)
        elif base == 'v_nop':
            self.cls = 'valu'
        elif base.startswith('v_'):
            self.cls = 'valu'
            wr |= set(R[0])
            for r in R[1:]:
                rd |= set(r)
            if base.startswith(('v_fmac', 'v_dot2c', 'v_pk_fmac', 'v_writelane')) or self.dpp or 'dst_sel' in mods:
                rd |= set(R[0])
            if base == 'v_cndmask_b32' and len(ops) == 3:
                rd |= set(SPECIAL['vcc'])
        elif base.startswith('ds_'):
            self.cls = 'ds'
            if base.startswith(('ds_read', 'ds_bpermute', 'ds_permute', 'ds_swizzle')):
                wr |= set(R[0])
                for r in R[1:]:
                    rd |= set(r)
            else:
                for r in R:
                    rd |= set(r)
        elif base.startswith(('buffer_', 'global_')):
            self.cls = 'vmem'
            is_lds = ' lds' in (' ' + mods) or 'load_lds' in base
            self.is_lds = is_lds
            if base in ('buffer_wbl2', 'buffer_inv'):
                pass
            elif is_lds:
                for r in R:
                    rd |= set(r)
                rd |= set(SPECIAL['m0'])
            elif '_load' in base:
                wr |= set(R[0])
                for r in R[1:]:
                    rd |= set(r)
            elif '_store' in base:
                for r in R:
                    rd |= set(r)
                d = R[0] if base.startswith('buffer_') else R[1]
                self.sdata = set(d)
                self.wide_store = base.endswith(('x3', 'x4'))
            elif '_atomic' in base:
                for r in R:
                    rd |= set(r)
                if 'sc0' in mods:
                    wr |= set(R[0])
            else:
                raise ValueError('unknown vmem ' + t)
        elif base.startswith(('s_load', 's_buffer_load', 's_memtime', 's_memrealtime')):
            self.cls = 'smem'
            wr |= set(R[0])
            for r in R[1:]:
                rd |= set(r)
        elif base in ('s_branch',) or base.startswith('s_cbranch'):
            self.cls = 'branch'
            self.branch = ops[0]
            if 'vcc' in base:
                rd |= set(SPECIAL['vcc'])
            if 'exec' in base:
                rd |= set(SPECIAL['exec'])
        elif base in ('s_waitcnt', 's_nop', 's_barrier', 's_endpgm', 's_sleep', 's_setprio'):
            self.cls = 'misc'
        elif base.startswith('s_cmp') or base.startswith('s_bitcmp'):
            self.cls = 'salu'
            for r in R:
                rd |= set(r)
        elif base.startswith('s_'):
            self.cls = 'salu'
            wr |= set(R[0])
            for r in R[1:]:
                rd |= set(r)
            if 'saveexec' in base:
                wr |= set(SPECIAL['exec'])
                rd |= set(SPECIAL['exec'])
            if base.startswith(('s_addk', 's_mulk', 's_cmov', 's_bitset')):
                rd |= set(R[0])
        else:
            raise ValueError('unknown op ' + t)
        self.rd, self.wr = rd, wr
        self.trans = base in TRANS


class Prog:
    def __init__(self):
        self.ins = []
        self.nlabel = 0

    def __call__(self, text, tag=None):
        for line in text.split('\n'):
            line = line.strip()
            if not line:
                continue
            if line.startswith(';'):
                self.ins.append(Ins(line, kind='raw'))
            elif line.endswith(':'):
                self.ins.append(Ins(line[:-1], kind='label'))
            else:
                self.ins.append(Ins(line, tag=tag))

    def raw(self, text):
        self.ins.append(Ins(text, kind='raw'))

    def label(self, name):
        self.ins.append(Ins(name, kind='label'))

    def newlabel(self, stem='L'):
        self.nlabel += 1
        return '%s_%d' % (stem, self.nlabel)

    def waitvm(self, *tags):
        i = Ins('', kind='waitvm')
        i.tags = set(tags)
        self.ins.append(i)

    def waitlgkm(self, *tags):
        i = Ins('', kind='waitlgkm')
        i.tags = set(tags)
        self.ins.append(i)

    def succs(self):
        n = len(self.ins)
        lab = {x.text: i for i, x in enumerate(self.ins) if x.kind == 'label'}
        S = []
        for i, x in enumerate(self.ins):
            s = []
            if x.kind == 'ins' and x.base == 's_endpgm':
                pass
            elif x.kind == 'ins' and x.cls == 'branch':
                s.append(lab[x.branch])
                if x.base != 's_branch' and i + 1 < n:
                    s.append(i + 1)
            elif i + 1 < n:
                s.append(i + 1)
            S.append(s)
        return S

    def run_waits(self):
        S = self.succs()
        n = len(self.ins)
        need = [None] * n
        IN = [None] * n
        IN[0] = ({}, {}, False)
        work = [0]
        inwork = {0}

        def merge(a, b):
            ch = False
            vm, lg, sm = dict(a[0]), dict(a[1]), a[2]
            for src, dst in ((b[0], vm), (b[1], lg)):
                for k, v in src.items():
                    if k not in dst or v < dst[k]:
                        dst[k] = v
                        ch = True
            if b[2] and not sm:
                sm = True
                ch = True
            return (vm, lg, sm), ch

        while work:
            i = work.pop()
            inwork.discard(i)
            vm, lg, sm = dict(IN[i][0]), dict(IN[i][1]), IN[i][2]
            x = self.ins[i]
            vN, lN = None, None
            if x.kind == 'waitvm':
                c = [v for k, v in vm.items() if k[0] == 'tag' and k[1] in x.tags]
                if c:
                    vN = min(c)
            elif x.kind == 'waitlgkm':
                c = [v for k, v in lg.items() if k[0] == 'tag' and k[1] in x.tags]
                if c:
                    lN = min(c)
            elif x.kind == 'ins':
                touched = x.rd | x.wr
                c = [vm[r] for r in touched if r in vm]
                if c:
                    vN = min(c)
                c = [lg[r] for r in touched if r in lg]
                if c:
                    lN = min(c)
            if lN is not None and sm:
                lN = 0
            if vN is not None:
                vN = min(vN, 63)
            if lN is not None:
                lN = min(lN, 15)
            old = need[i] or (None, None)
            nv = old[0] if vN is None else (vN if old[0] is None else min(vN, old[0]))
            nl = old[1] if lN is None else (lN if old[1] is None else min(lN, old[1]))
            need[i] = (nv, nl)
            if nv is not None:
                vm = {k: v for k, v in vm.items() if v < nv}
            if nl is not None:
                lg = {k: v for k, v in lg.items() if v < nl}
                if nl == 0:
                    sm = False
            if x.kind == 'ins':
                if x.base == 's_waitcnt':
                    m = re.search(r'vmcnt\((\d+)\)', x.text)
                    if m:
                        vm = {k: v for k, v in vm.items() if v < int(m.group(1))}
                    m = re.search(r'lgkmcnt\((\d+)\)', x.text)
                    if m:
                        N = int(m.group(1))
                        if N == 0:
                            lg = {}
                            sm = False
                        elif not sm:
                            lg = {k: v for k, v in lg.items() if v < N}
                elif x.cls == 'vmem':
                    vm = {k: v + 1 for k, v in vm.items()}
                    for r in x.wr:
                        vm[r] = 0
                    if x.tag is not None:
                        vm[('tag', x.tag)] = 0
                elif x.cls == 'ds':
                    lg = {k: v + 1 for k, v in lg.items()}
                    for r in x.wr:
                        lg[r] = 0
                    if x.tag is not None:
                        lg[('tag', x.tag)] = 0
                elif x.cls == 'smem':
                    sm = True
                    for r in x.wr:
                        lg[r] = 0
            out = (vm, lg, sm)
            for j in S[i]:
                if IN[j] is None:
                    IN[j] = out
                    ch = True
                else:
                    IN[j], ch = merge(IN[j], out)
                if ch and j not in inwork:
                    work.append(j)
                    inwork.add(j)
        new = []
        for i, x in enumerate(self.ins):
            nv, nl = need[i] or (None, None)
            if nv is not None or nl is not None:
                t = 's_waitcnt'
                if nv is not None:
                    t += ' vmcnt(%d)' % nv
                if nl is not None:
                    t += ' lgkmcnt(%d)' % nl
                new.append(Ins(t))
            if x.kind not in ('waitvm', 'waitlgkm'):
                new.append(x)
        self.ins = new

    @staticmethod
    def required(x, ev):
        kind, regs, info = ev
        v = 0
        if kind == 'valu_w':
            if x.cls == 'mfma' and regs & x.rd:
                v = 2
            if x.cls == 'valu':
                if (x.base.startswith('v_permlane') or x.dpp) and regs & x.rd:
                    v = max(v, 2)
                if x.base in ('v_readfirstlane_b32', 'v_readlane_b32') and regs & x.rd:
                    v = max(v, 1)
                if info == 'trans' and not x.trans and regs & x.rd:
                    v = max(v, 1)
                if info == 'opsel' and regs & (x.rd | x.wr):
                    v = max(v, 1)
        elif kind == 'valu_ws':
            if x.cls == 'vmem' and regs & x.rd:
                v = 5
            if x.cls == 'valu' and regs & x.rd:
                v = 4 if x.base in ('v_readlane_b32', 'v_writelane_b32') else 2
            if x.cls == 'branch' and regs & x.rd:
                v = max(v, 1)
        elif kind == 'mfma_w':
            passes, dkey = info
            big = 8 if passes == 4 else 12
            if x.cls == 'mfma':
                if regs & x.srcab:
                    v = big
                if regs & x.srcc and x.ckey != dkey:
                    v = max(v, big - 2)
                if regs & x.wr and not (x.dkey == dkey):
                    v = max(v, big)
            elif x.cls in ('valu', 'vmem', 'ds'):
                if regs & (x.rd | x.wr):
                    v = big
        elif kind == 'mfma_c':
            if x.cls == 'valu' and regs & x.wr:
                v = 3 if info == 4 else 7
        elif kind == 'm0':
            if x.cls == 'vmem' and getattr(x, 'is_lds', False):
                v = 1
        elif kind == 'store':
            if regs & x.wr:
                v = 2 if x.cls in ('valu', 'mfma') else 1
        return v

    @staticmethod
    def events(x):
        ev = []
        if x.cls == 'valu':
            vw = frozenset(r for r in x.wr if r[0] in 'va')
            sw = frozenset(r for r in x.wr if r[0] == 's')
            if vw:
                info = 'trans' if x.trans else ('opsel' if ('dst_sel' in x.mods) else None)
                ev.append(('valu_w', vw, info))
            if sw:
                ev.append(('valu_ws', sw, None))
        elif x.cls == 'mfma':
            ev.append(('mfma_w', frozenset(x.wr), (x.passes, x.dkey)))
            if x.srcc:
                ev.append(('mfma_c', frozenset(x.srcc), x.passes))
        elif x.cls == 'salu' and ('s', 'm0') in x.wr:
            ev.append(('m0', frozenset(), None))
        elif x.cls == 'vmem' and x.wide_store:
            ev.append(('store', frozenset(x.sdata), None))
        return ev

    def run_hazards(self):
        MAXAGE = 13
        S = self.succs()
        n = len(self.ins)
        nops = [0] * n
        IN = [None] * n
        IN[0] = {}
        work = [0]
        inwork = {0}
        while work:
            i = work.pop()
            inwork.discard(i)
            st = IN[i]
            x = self.ins[i]
            if x.kind == 'ins':
                k = nops[i]
                for ev, age in st.items():
                    k = max(k, self.required(x, ev) - age)
                nops[i] = k
                step = k + 1
                if x.base == 's_nop':
                    step = k + int(x.ops[0]) + 1
                out = {ev: a + step for ev, a in st.items() if a + step < MAXAGE}
                for ev in self.events(x):
                    out[ev] = 0
            else:
                out = st
            for j in S[i]:
                if IN[j] is None:
                    IN[j] = dict(out)
                    ch = True
                else:
                    ch = False
                    for ev, a in out.items():
                        if ev not in IN[j] or a < IN[j][ev]:
                            IN[j][ev] = a
                            ch = True
                if ch and j not in inwork:
                    work.append(j)
                    inwork.add(j)
        new = []
        self.total_nops = 0
        for i, x in enumerate(self.ins):
            if nops[i] > 0:
                new.append(Ins('s_nop %d' % (nops[i] - 1)))
                self.total_nops += nops[i]
            new.append(x)
        self.ins = new

    def finish(self):
        self.run_waits()
        self.run_hazards()
        out = []
        for x in self.ins:
            if x.kind == 'label':
                out.append(x.text + ':')
            elif x.kind == 'raw':
                out.append('    ' + x.text)
            else:
                out.append('    ' + x.text)
        return '\n'.join(out) + '\n'


def vr(b, n=1):
    return 'v%d' % b if n == 1 else 'v[%d:%d]' % (b, b + n - 1)


def ar(b, n=1):
    return 'a%d' % b if n == 1 else 'a[%d:%d]' % (b, b + n - 1)


def sr(b, n=1):
    return 's%d' % b if n == 1 else 's[%d:%d]' % (b, b + n - 1)
```

```python
import sys, math, struct, os
sys.path.insert(0, os.path.dirname(os.path.abspath(__file__)))
from asmlib import Prog, vr, ar, sr

NAME = 'sequential_preLN__sliding_block__mixer_s_mlp__prompt'
OPT = dict(stop=99, stamps=False, force_slow=False, force_fb=False)
for a in sys.argv[1:]:
    if '=' in a:
        k, v = a.split('=')
        OPT[k] = int(v) if v.lstrip('-').isdigit() else v

KV, KVS = 0x0000000, 5120
FLG = 0x0500000
OB, HB, GB, XB, GH = 0x0600000, 0x0800000, 0x0A00000, 0x0C00000, 0x0E00000
PART = 0x1000000
STAMP = 0x2000000
WS_BYTES = 268435456
OOB = 0x40000000
L_KV, L_O, L_H, L_G, L_HALO, L_X, L_P = [128 * i for i in range(7)]
SPIN = 1 << 18


def f2u(x):
    return struct.unpack('<I', struct.pack('<f', x))[0]


def hx(x):
    return '0x%x' % (x & 0xffffffff)


S_X, S_WQ, S_WO, S_W1, S_W2, S_W3, S_W4, S_OUT, S_DBG, S_WS = [4 + 4 * i for i in range(10)]
sT, sM, sW, sFAST, sXCC, sW4K = 44, 45, 46, 47, 48, 49
sC3 = 50
sC1 = 53
sFLG = 56
sSPIN = 57
sKVR = 58
sKVO = 62
sTILE = 63
sM1, sM2, sM3 = 64, 66, 68
sA, sB, sC, sD, sE, sF, sG = 70, 71, 72, 73, 74, 75, 76
sXS = 77
sSTAMP = 78


class Alloc:
    def __init__(self, n):
        self.free = [True] * n

    def __call__(self, n=1, al=None):
        al = al or (4 if n >= 4 else (2 if n == 2 else 1))
        for b in range(0, len(self.free) - n + 1, al):
            if all(self.free[b:b + n]):
                for i in range(b, b + n):
                    self.free[i] = False
                return b
        raise RuntimeError('out of registers for %d' % n)

    def rel(self, b, n=1):
        for i in range(b, b + n):
            assert not self.free[i], ('double free', i)
            self.free[i] = True

    def used(self):
        return sum(1 for f in self.free if not f)


p = Prog()
V = Alloc(256)
nstamp = [0]


def stamp():
    if OPT['stamps']:
        p('s_memtime %s' % sr(sSTAMP + 2 * nstamp[0], 2))
        nstamp[0] += 1
        assert nstamp[0] <= 12


def mf16(d, a, b, c):
    p('v_mfma_f32_16x16x32_bf16 %s, %s, %s, %s' % (d, a, b, c))


def mf32(d, a, b, c):
    p('v_mfma_f32_32x32x16_bf16 %s, %s, %s, %s' % (d, a, b, c))


def bar():
    p('s_waitcnt lgkmcnt(0)')
    p('s_barrier')


def dma(voff, srd, soff, imm, tag, sc1=False):
    p('buffer_load_dwordx4 %s, %s, %s offen offset:%d%s lds' % (vr(voff), sr(srd, 4), soff, imm, ' sc1' if sc1 else ''), tag=tag)


def setm0(base_sreg, const):
    if base_sreg is None:
        p('s_mov_b32 m0, %s' % hx(const))
    else:
        p('s_add_u32 m0, %s, %s' % (sr(base_sreg), hx(const)))


def dual_store(stores, tag):
    ls, le = p.newlabel('slow'), p.newlabel('join')
    p('s_cmp_eq_u32 %s, 0' % sr(sFAST))
    p('s_cbranch_scc1 %s' % ls)
    for s in stores:
        p(s, tag=tag)
    p('s_branch %s' % le)
    p.label(ls)
    for s in stores:
        p(s + ' sc1', tag=tag)
    p.label(le)


def poll(loads, checks):
    lp, ld = p.newlabel('poll'), p.newlabel('polled')
    p('s_mov_b32 %s, %s' % (sr(sSPIN), hx(SPIN)))
    p.label(lp)
    for l in loads:
        p(l)
    if len(checks) == 1:
        p('v_cmp_eq_u32 vcc, -1, %s' % vr(checks[0]))
    else:
        p('v_cmp_eq_u32 vcc, -1, %s' % vr(checks[0]))
        for c in checks[1:]:
            p('v_cmp_eq_u32 %s, -1, %s' % (sr(sF - 1, 2), vr(c)))
            p('s_or_b64 vcc, vcc, %s' % sr(sF - 1, 2))
    p('s_cbranch_vccz %s' % ld)
    p('s_sub_u32 %s, %s, 1' % (sr(sSPIN), sr(sSPIN)))
    p('s_cbranch_scc0 %s' % lp)
    p.label(ld)


def finish_kernel():
    if OPT['stamps']:
        stamp()
        t = V(1)
        a = V(1)
        p('s_waitcnt lgkmcnt(0)')
        p('s_lshl_b32 %s, s2, 8' % sr(sA))
        p('s_lshl_b32 %s, %s, 6' % (sr(sB), sr(sW)))
        p('s_add_u32 %s, %s, %s' % (sr(sA), sr(sA), sr(sB)))
        p('s_add_u32 %s, %s, %s' % (sr(sA), sr(sA), hx(STAMP)))
        for i in range(nstamp[0]):
            p('v_mov_b32 %s, %s' % (vr(t), sr(sSTAMP + 2 * i)))
            p('buffer_store_dword %s, %s, %s, %s offen offset:%d' % (vr(t), vr(vL0), sr(S_WS, 4), sr(sA), 4 * i))
        p('v_mov_b32 %s, %s' % (vr(t), sr(sFAST)))
        p('buffer_store_dword %s, %s, %s, %s offen offset:%d' % (vr(t), vr(vL0), sr(S_WS, 4), sr(sA), 60))
    p('s_waitcnt vmcnt(0)')
    p.label('KEND')
    p('s_endpgm')


p('s_cmp_ge_u32 s2, 256')
p('s_cbranch_scc1 KEND')
for srd, off in ((S_X, 0), (S_WQ, 8), (S_WS, 80), (S_WO, 16), (S_W1, 32), (S_W2, 40), (S_W3, 48), (S_W4, 56), (S_OUT, 64), (S_DBG, 72)):
    p('s_load_dwordx2 %s, s[0:1], %d' % (sr(srd, 2), off))
stamp()
vLane, vL16, vL0, vZero = V(1), V(1), V(1), V(1)
assert vLane == 0
vG, vJ = V(1), V(1)
t0, t1, t2, t3 = V(1), V(1), V(1), V(1)
p('v_lshrrev_b32 %s, 6, v0' % vr(t0))
p('v_and_b32 v0, 63, v0')
p('v_readfirstlane_b32 %s, %s' % (sr(sW), vr(t0)))
for srd, n in ((S_X, 2048 * 1024), (S_WQ, 512 * 3072), (S_WO, 512 * 1024), (S_W1, 512 * 1024), (S_W2, 512 * 1024),
               (S_W3, 512 * 3584), (S_W4, 1792 * 1024), (S_OUT, 2048 * 1024), (S_DBG, 256), (S_WS, WS_BYTES)):
    p('s_mov_b32 %s, %s' % (sr(srd + 2), hx(n)))
    p('s_mov_b32 %s, 0x20000' % sr(srd + 3))
p('s_and_b32 %s, s2, 7' % sr(sXS))
p('s_lshr_b32 %s, s2, 6' % sr(sA))
p('s_lshl_b32 %s, %s, 2' % (sr(sT), sr(sXS)))
p('s_add_u32 %s, %s, %s' % (sr(sT), sr(sT), sr(sA)))
p('s_bfe_u32 %s, s2, 0x30003' % sr(sM))
p('s_lshl_b32 %s, %s, 12' % (sr(sW4K), sr(sW)))
p('s_getreg_b32 %s, hwreg(HW_REG_XCC_ID,0,4)' % sr(sXCC))
for s in (1, 2, 3):
    p('s_mov_b32 %s, %s' % (sr(sC3 + s - 1), hx(s * (32 * 3072 - 1024))))
    p('s_mov_b32 %s, %s' % (sr(sC1 + s - 1), hx(s * (32 * 1024 - 1024))))
p('s_lshl_b32 %s, %s, 3' % (sr(sA), sr(sT)))
p('s_add_u32 %s, %s, %s' % (sr(sA), sr(sA), sr(sM)))
p('s_lshl_b32 %s, %s, 2' % (sr(sA), sr(sA)))
p('s_add_u32 %s, %s, %s' % (sr(sA), sr(sA), sr(sW)))
p('s_lshl_b32 %s, %s, 10' % (sr(sFLG), sr(sA)))
p('s_add_u32 %s, %s, %s' % (sr(sFLG), sr(sFLG), hx(FLG)))
p('s_mul_i32 %s, %s, %d' % (sr(sKVO), sr(sA), KVS))
p('s_lshl_b32 %s, %s, 2' % (sr(sTILE), sr(sT)))
p('s_add_u32 %s, %s, %s' % (sr(sTILE), sr(sTILE), sr(sW)))
p('s_lshl_b32 %s, %s, 14' % (sr(sTILE), sr(sTILE)))
p('v_lshlrev_b32 %s, 4, v0' % vr(vL16))
p('v_lshrrev_b32 %s, 4, v0' % vr(vG))
p('v_and_b32 %s, 15, v0' % vr(vJ))

vXo, vWo, vWt = V(1), V(1), V(1)
p('s_lshr_b32 %s, %s, 10' % (sr(sA), sr(sTILE)))
p('v_add_u32 %s, %s, %s' % (vr(t0), sr(sA), vr(vJ)))
p('v_lshlrev_b32 %s, 10, %s' % (vr(t0), vr(t0)))
p('v_lshl_add_u32 %s, %s, 4, %s' % (vr(vXo), vr(vG), vr(t0)))
vSw, vJr = V(1), V(1)
p('v_lshrrev_b32 %s, 3, v0' % vr(vJr))
p('v_and_b32 %s, 6, %s' % (vr(t0), vr(vJr)))
p('v_and_b32 %s, 7, v0' % vr(t1))
p('v_xor_b32 %s, %s, %s' % (vr(t0), vr(t0), vr(t1)))
p('v_lshlrev_b32 %s, 4, %s' % (vr(vSw), vr(t0)))
p('s_lshl_b32 %s, %s, 7' % (sr(sB), sr(sM)))
p('v_add_u32 %s, %s, %s' % (vr(vSw), sr(sB), vr(vSw)))
p('s_and_b32 %s, %s, 1' % (sr(sA), sr(sW)))
p('s_lshl_b32 %s, %s, 4' % (sr(sA), sr(sA)))
p('s_lshr_b32 %s, %s, 1' % (sr(sC), sr(sW)))
p('s_lshl_b32 %s, %s, 2' % (sr(sD), sr(sC)))
p('s_add_u32 %s, %s, %s' % (sr(sD), sr(sD), sr(sA)))
p('v_lshrrev_b32 %s, 5, v0' % vr(t0))
p('v_and_b32 %s, 3, %s' % (vr(t1), vr(vJr)))
p('v_lshl_add_u32 %s, %s, 3, %s' % (vr(t0), vr(t0), vr(t1)))
p('v_add_u32 %s, %s, %s' % (vr(t0), sr(sD), vr(t0)))
p('v_mul_u32_u24 %s, 0xc00, %s' % (vr(t0), vr(t0)))
p('v_add_u32 %s, %s, %s' % (vr(vWo), vr(t0), vr(vSw)))
vClr = V(4)
for i in range(4):
    p('v_mov_b32 %s, -1' % vr(vClr + i))
p('buffer_store_dwordx4 %s, %s, %s, %s offen sc1' % (vr(vClr, 4), vr(vL16), sr(S_WS, 4), sr(sFLG)), tag='clr')

CH = 16384
PASS_COL = [1024, 2048, 0]
WCH = [[4, 5, 6, 7], [8, 9, 0, 4], [1, 5, 2, 6]]


def dma_x(G):
    for s in range(4):
        imm = 256 * G + 64 * s
        setm0(sW4K, G * CH + 1024 * s - imm)
        dma(vXo, S_X, '0', imm, 'g%d' % G)


def dma_wq(ps, G):
    setm0(sW4K, WCH[ps][G] * CH)
    p('v_add_u32 %s, %s, %s' % (vr(vWt), hx(128 * G * 3072 + PASS_COL[ps]), vr(vWo)))
    for s in range(4):
        dma(vWt, S_WQ, '0' if s == 0 else sr(sC3 + s - 1), 1024 * s, 'g%d' % (4 * ps + G))


for G in range(4):
    dma_x(G)
    dma_wq(0, G)
dma_wq(1, 0)
dma_wq(1, 1)
V.rel(vClr, 4)

p('v_mov_b32 %s, 0' % vr(vZero))
p('v_mov_b32 %s, %s' % (vr(vL0), hx(OOB)))
p('v_cmp_eq_u32 vcc, 0, v0')
p('v_cndmask_b32 %s, %s, %s, vcc' % (vr(vL0), vr(vL0), vr(vZero)))
vOnes = V(4)
for i in range(4):
    p('v_mov_b32 %s, 0x3f803f80' % vr(vOnes + i))
ONES = vr(vOnes, 4)
p('s_mov_b32 %s, 0x22222222' % sr(sM1))
p('s_mov_b32 %s, 0x22222222' % sr(sM1 + 1))
p('s_mov_b32 %s, 0x44444444' % sr(sM2))
p('s_mov_b32 %s, 0x44444444' % sr(sM2 + 1))
p('s_mov_b32 %s, 0x88888888' % sr(sM3))
p('s_mov_b32 %s, 0x88888888' % sr(sM3 + 1))
vTr0 = V(1)
p('v_bfe_u32 %s, v0, 2, 3' % vr(t0))
p('v_lshrrev_b32 %s, 1, %s' % (vr(t1), vr(t0)))
p('v_lshlrev_b32 %s, 5, %s' % (vr(t1), vr(t1)))
p('v_lshl_add_u32 %s, %s, 7, %s' % (vr(t1), vr(t0), vr(t1)))
p('v_and_b32 %s, 3, v0' % vr(t0))
p('v_lshl_add_u32 %s, %s, 3, %s' % (vr(t1), vr(t0), vr(t1)))
p('v_lshrrev_b32 %s, 5, v0' % vr(t0))
p('v_lshl_add_u32 %s, %s, 12, %s' % (vr(vTr0), vr(t0), vr(t1)))
vTrP = V(3, 1)
p('s_lshl_b32 %s, %s, 5' % (sr(sA), sr(sW)))
p('v_xor_b32 %s, %s, %s' % (vr(vTrP), sr(sA), vr(vTr0)))
p('v_add_u32 %s, 0x10000, %s' % (vr(vTrP + 1), vr(vTrP)))
p('v_add_u32 %s, 0x20000, %s' % (vr(vTrP + 2), vr(vTrP)))
vXs = V(1)
p('v_add_u32 %s, %s, %s' % (vr(vXs), sr(sW4K), vr(vL16)))
vStat = V(1)
p('v_lshrrev_b32 %s, 2, %s' % (vr(t0), vr(vJ)))
p('v_cmp_eq_u32 vcc, %s, %s' % (vr(t0), vr(vG)))
p('v_lshlrev_b32 %s, 3, %s' % (vr(t1), vr(vJ)))
p('v_mov_b32 %s, %s' % (vr(vStat), hx(OOB)))
p('v_cndmask_b32 %s, %s, %s, vcc' % (vr(vStat), vr(vStat), vr(t1)))
vVo, vVc = V(1), V(1)
p('v_lshrrev_b32 %s, 5, v0' % vr(t0))
p('v_lshl_add_u32 %s, %s, 4, %s' % (vr(t0), vr(t0), vr(vJ)))
p('v_lshlrev_b32 %s, 4, %s' % (vr(t0), vr(t0)))
p('v_and_b32 %s, 11, v0' % vr(t1))
p('v_cmp_eq_u32 vcc, 0, %s' % vr(t1))
p('v_mov_b32 %s, %s' % (vr(t2), hx(OOB)))
p('v_mov_b32 %s, 0x200' % vr(t3))
p('v_cndmask_b32 %s, %s, %s, vcc' % (vr(t2), vr(t2), vr(t3)))
p('v_cndmask_b32 %s, %s, %s, vcc' % (vr(vVc), vr(vZero), vr(vOnes)))
p('v_and_b32 %s, 16, v0' % vr(t1))
p('v_cmp_eq_u32 vcc, 0, %s' % vr(t1))
p('v_cndmask_b32 %s, %s, %s, vcc' % (vr(vVo), vr(t2), vr(t0)))
vCd, vCf = V(16), V(16)
NEG = f2u(-1e30)
p('v_and_b32 %s, 31, v0' % vr(t0))
p('v_lshrrev_b32 %s, 5, v0' % vr(t1))
p('v_lshlrev_b32 %s, 2, %s' % (vr(t1), vr(t1)))
vQm = V(1)
p('v_sub_u32 %s, %s, %s' % (vr(vQm), vr(t0), vr(t1)))
p('v_mov_b32 %s, %s' % (vr(t2), hx(NEG)))
for r in range(16):
    p('v_cmp_le_i32 vcc, %d, %s' % (8 * (r >> 2) + (r & 3), vr(vQm)))
    p('v_cndmask_b32 %s, %s, %s, vcc' % (vr(vCd + r), vr(t2), vr(vZero)))
    p('v_cndmask_b32 %s, %s, %s, vcc' % (vr(vCf + r), vr(vZero), vr(t2)))
vPoll = V(1)
for d in range(1, 5):
    p('s_sub_u32 %s, %s, %d' % (sr(sA), sr(sKVO), d * 32 * KVS))
    p('s_cmp_ge_u32 %s, %d' % (sr(sT), d))
    p('s_cselect_b32 %s, %s, %s' % (sr(sKVR + d - 1), sr(sA), sr(sKVO)))
p('v_add_u32 %s, 1, v0' % vr(t0))
p('v_cmp_ge_u32 vcc, %s, %s' % (sr(sT), vr(t0)))
p('v_cndmask_b32 %s, %s, %s, vcc' % (vr(t0), vr(vZero), vr(t0)))
p('v_lshlrev_b32 %s, 15, %s' % (vr(t0), vr(t0)))
p('v_sub_u32 %s, %s, %s' % (vr(t0), sr(sFLG), vr(t0)))
p('v_cmp_gt_u32 vcc, 4, v0')
p('v_mov_b32 %s, %s' % (vr(vPoll), hx(OOB)))
p('v_cndmask_b32 %s, %s, %s, vcc' % (vr(vPoll), vr(vPoll), vr(t0)))

LAG = 1
vWb = [V(16), V(16)]
vSb = [V(16), V(16)]
vAccA, vAccB = V(16), V(16)
vCsA, vCsB = V(4), V(4)
vSum, vGram = V(4), V(4)
vRM = V(8)
vK, vVf, vQ = V(8), V(16), V(8)
STAT_LDS = 3 * CH


def xa(s, u):
    return ar((s * 4 + u) * 4, 4)


def p1_reads(k):
    ps, G = k >> 2, k & 3
    base = WCH[ps][G] * CH
    for s in range(4):
        if ps == 0:
            for u in range(4):
                p('ds_read_b128 %s, %s offset:%d' % (xa(4 * G + s, u), vr(vL16), G * CH + 4096 * u + 1024 * s))
        for hh in range(2):
            a = base + 8192 * hh + 1024 * s
            p('ds_read_b64_tr_b16 %s, %s offset:%d' % (vr(vWb[k & 1] + 4 * s + 2 * hh, 2), vr(vTrP + (a >> 16)), a & 0xffff))
        if ps == 0:
            p('ds_read_b128 %s, %s offset:%d' % (vr(vSb[k & 1] + 4 * s, 4), vr(vXs), G * CH + 1024 * s))


def p1_mfma(k, s):
    ps, G = k >> 2, k & 3
    st = 4 * G + s
    W = vr(vWb[k & 1] + 4 * s, 4)
    acc, cs = (vAccB, vCsB) if ps == 1 else (vAccA, vCsA)
    for u in range(4):
        d = vr(acc + 4 * u, 4)
        c = '0' if st == 0 else d
        if ps == 1:
            mf16(d, xa(st, u), W, c)
        else:
            mf16(d, W, xa(st, u), c)
    d = vr(cs, 4)
    c = '0' if st == 0 else d
    if ps == 1:
        mf16(d, ONES, W, c)
    else:
        mf16(d, W, ONES, c)
    if ps == 0:
        X = vr(vSb[k & 1] + 4 * s, 4)
        mf16(vr(vSum, 4), ONES, X, '0' if st == 0 else vr(vSum, 4))
        mf16(vr(vGram, 4), X, X, '0' if st == 0 else vr(vGram, 4))


def diag_select(dst, g):
    p('v_cndmask_b32 %s, %s, %s, %s' % (vr(dst), vr(g), vr(g + 1), sr(sM1, 2)))
    p('v_cndmask_b32 %s, %s, %s, %s' % (vr(dst), vr(dst), vr(g + 2), sr(sM2, 2)))
    p('v_cndmask_b32 %s, %s, %s, %s' % (vr(dst), vr(dst), vr(g + 3), sr(sM3, 2)))


EPS = f2u(1e-5)
INV_D = f2u(1.0 / 512)


def mean_rstd(mu, rs, s, ss, var=None):
    var = var if var is not None else ss
    p('v_mul_f32 %s, %s, %s' % (vr(mu), hx(INV_D), vr(s)))
    p('v_mul_f32 %s, %s, %s' % (vr(var), hx(INV_D), vr(ss)))
    p('v_fma_f32 %s, -%s, %s, %s' % (vr(var), vr(mu), vr(mu), vr(var)))
    p('v_max_f32 %s, 0, %s' % (vr(var), vr(var)))
    p('v_add_f32 %s, %s, %s' % (vr(rs), hx(EPS), vr(var)))
    p('v_rsq_f32 %s, %s' % (vr(rs), vr(rs)))


def p1_stats():
    a = V(2)
    diag_select(t0, vGram)
    mean_rstd(t1, a, vSum, t0)
    p('v_mul_f32 %s, %s, %s' % (vr(a + 1), vr(t1), vr(a)))
    p('s_lshl_b32 %s, %s, 7' % (sr(sA), sr(sW)))
    p('s_add_u32 %s, %s, %d' % (sr(sA), sr(sA), STAT_LDS))
    p('v_lshl_add_u32 %s, %s, 3, %s' % (vr(t0), vr(vJ), sr(sA)))
    p('s_mov_b32 exec_lo, 0x00f0000f')
    p('s_mov_b32 exec_hi, 0xf0000f00')
    p('ds_write_b64 %s, %s' % (vr(t0), vr(a, 2)))
    p('s_mov_b64 exec, -1')
    V.rel(a, 2)


def col_epilogue(acc, cs, dst):
    for u in range(4):
        R, M = vRM + 2 * u, vRM + 2 * u + 1
        for r in range(4):
            p('v_mul_f32 %s, %s, %s' % (vr(t0 + r), vr(M), vr(cs + r)))
        for r in range(4):
            p('v_fma_f32 %s, %s, %s, -%s' % (vr(t0 + r), vr(acc + 4 * u + r), vr(R), vr(t0 + r)))
        d = dst + 4 * (u >> 1) + 2 * (u & 1)
        p('v_cvt_pk_bf16_f32 %s, %s, %s' % (vr(d), vr(t0), vr(t1)))
        p('v_cvt_pk_bf16_f32 %s, %s, %s' % (vr(d + 1), vr(t2), vr(t3)))
    for b in range(2):
        p('v_permlane16_swap_b32 %s, %s' % (vr(dst + 4 * b), vr(dst + 4 * b + 2)))
        p('v_permlane16_swap_b32 %s, %s' % (vr(dst + 4 * b + 1), vr(dst + 4 * b + 3)))


assert t1 == t0 + 1 and t2 == t0 + 2 and t3 == t0 + 3
vRow = vSb[0]
assert vSb[1] == vSb[0] + 16
vHello = V(1)

for k in range(12):
    p.waitvm('g%d' % k)
    bar()
    if k == 0:
        stamp()
        lh = p.newlabel('nohello')
        p('s_cmp_lg_u32 %s, 0' % sr(sW))
        p('s_cbranch_scc1 %s' % lh)
        p('s_or_b32 %s, %s, 0x80' % (sr(sA), sr(sXCC)))
        p('v_mov_b32 %s, %s' % (vr(t0), sr(sA)))
        p('buffer_store_byte %s, %s, %s, s2 offen sc1' % (vr(t0), vr(vL0), sr(S_DBG, 4)))
        p.label(lh)
    if k == 1:
        dma_wq(1, 2)
        dma_wq(1, 3)
    if k == 2:
        dma_wq(2, 0)
        dma_wq(2, 1)
    if k == 3:
        dma_wq(2, 2)
        dma_wq(2, 3)
    if k == 5:
        p('v_lshlrev_b32 %s, 3, %s' % (vr(t0), vr(vJ)))
        for u in range(4):
            p('ds_read_b64 %s, %s offset:%d' % (vr(vRM + 2 * u, 2), vr(t0), STAT_LDS + 128 * u))
    if k == 7:
        p('v_lshlrev_b32 %s, 5, %s' % (vr(t0), vr(vG)))
        for u in range(4):
            for h in range(2):
                p('ds_read_b128 %s, %s offset:%d' % (vr(vRow + 8 * u + 4 * h, 4), vr(t0), STAT_LDS + 128 * u + 16 * h))
    p1_reads(k)
    if k > 0:
        for s in range(4 - LAG, 4):
            p1_mfma(k - 1, s)
    if k == 4:
        stamp()
        p1_stats()
    for s in range(4 - LAG):
        p1_mfma(k, s)
    if k == 5:
        col_epilogue(vAccA, vCsA, vK)
        for b in range(2):
            p('buffer_store_dwordx4 %s, %s, %s, %s offen offset:%d sc1' % (vr(vK + 4 * b, 4), vr(vL16), sr(S_WS, 4), sr(sKVO), 1024 * b), tag='kv')
    if k == 8:
        for u in range(4):
            for r in range(4):
                R = vRow + 8 * u + 2 * r
                p('v_mul_f32 %s, %s, %s' % (vr(t0 + r), vr(R + 1), vr(vCsB)))
            for r in range(4):
                R = vRow + 8 * u + 2 * r
                p('v_fma_f32 %s, %s, %s, -%s' % (vr(t0 + r), vr(vAccB + 4 * u + r), vr(R), vr(t0 + r)))
            d = vVf + 4 * u
            p('v_mov_b32 %s, %s' % (vr(d + 2), vr(vVc)))
            p('v_mov_b32 %s, %s' % (vr(d + 3), vr(vVc)))
            p('v_cvt_pk_bf16_f32 %s, %s, %s' % (vr(d), vr(t0), vr(t1)))
            p('v_cvt_pk_bf16_f32 %s, %s, %s' % (vr(d + 1), vr(t2), vr(t3)))
            p('v_permlane16_swap_b32 %s, %s' % (vr(d), vr(d + 2)))
            p('v_permlane16_swap_b32 %s, %s' % (vr(d + 1), vr(d + 3)))
            p('v_permlane32_swap_b32 %s, %s' % (vr(d), vr(d + 2)))
            p('v_permlane32_swap_b32 %s, %s' % (vr(d + 1), vr(d + 3)))
            p('buffer_store_dwordx4 %s, %s, %s, %s offen offset:%d sc1' % (vr(d, 4), vr(vVo), sr(S_WS, 4), sr(sKVO), 2048 + 640 * u), tag='kv')
    if k == 9:
        p('v_lshlrev_b32 %s, 2, v0' % vr(t0))
        p('buffer_load_dword %s, %s, %s, 0 offen sc1' % (vr(vHello), vr(t0), sr(S_DBG, 4)))
    if k == 10:
        p.waitvm('kv')
        p('buffer_store_dword %s, %s, %s, %s offen offset:%d sc1' % (vr(vZero), vr(vL0), sr(S_WS, 4), sr(sFLG), L_KV))
for s in range(4 - LAG, 4):
    p1_mfma(11, s)
stamp()
lp, ld = p.newlabel('hello'), p.newlabel('helloed')
p('s_mov_b32 %s, %s' % (sr(sSPIN), hx(SPIN)))
p.label(lp)
p('v_and_b32 %s, 0x80808080, %s' % (vr(t1), vr(vHello)))
p('v_cmp_ne_u32 vcc, 0x80808080, %s' % vr(t1))
p('s_cbranch_vccz %s' % ld)
p('v_lshlrev_b32 %s, 2, v0' % vr(t0))
p('buffer_load_dword %s, %s, %s, 0 offen sc1' % (vr(vHello), vr(t0), sr(S_DBG, 4)))
p('s_sub_u32 %s, %s, 1' % (sr(sSPIN), sr(sSPIN)))
p('s_cbranch_scc0 %s' % lp)
p.label(ld)
p('s_and_b32 %s, %s, 3' % (sr(sA), sr(sXS)))
p('s_lshl_b32 %s, %s, 3' % (sr(sA), sr(sA)))
p('v_bfe_u32 %s, %s, %s, 4' % (vr(t1), vr(vHello), sr(sA)))
p('v_cmp_ne_u32 vcc, %s, %s' % (sr(sXCC), vr(t1)))
p('s_lshr_b32 %s, %s, 2' % (sr(sA), sr(sXS)))
p('s_and_b32 %s, %s, 3' % (sr(sB), sr(sT)))
p('s_lshl_b32 %s, %s, 4' % (sr(sB), sr(sB)))
p('s_add_u32 %s, %s, %s' % (sr(sA), sr(sA), sr(sB)))
p('s_mov_b32 %s, 0x5555' % sr(sC))
p('s_mov_b32 %s, 0' % sr(sD))
p('s_lshl_b64 %s, %s, %s' % (sr(sC, 2), sr(sC, 2), sr(sA)))
p('s_and_b64 %s, %s, vcc' % (sr(sC, 2), sr(sC, 2)))
p('s_cselect_b32 %s, 0, %d' % (sr(sFAST), 0 if OPT['force_slow'] else 1))
V.rel(vHello)

vKr = V(32)
poll(['buffer_load_dword %s, %s, %s, 0 offen sc1' % (vr(t0), vr(vPoll), sr(S_WS, 4))], [t0])
stamp()
for d in range(1, 5):
    for b in (1, 0):
        p('buffer_load_dwordx4 %s, %s, %s, %s offen offset:%d sc1' % (vr(vKr + 8 * (d - 1) + 4 * b, 4), vr(vL16), sr(S_WS, 4), sr(sKVR + d - 1), 1024 * b))
        for u in (2 * b, 2 * b + 1):
            p('buffer_load_dwordx4 %s, %s, %s, %s offen offset:%d sc1' % (ar(16 * (d - 1) + 4 * u, 4), vr(vVo), sr(S_WS, 4), sr(sKVR + d - 1), 2048 + 640 * u))
vXres = V(8)
p('s_lshr_b32 %s, %s, 10' % (sr(sA), sr(sTILE)))
p('v_add_u32 %s, %s, %s' % (vr(t0), sr(sA), vr(vJ)))
p('v_lshlrev_b32 %s, 10, %s' % (vr(t0), vr(t0)))
p('v_lshl_add_u32 %s, %s, 3, %s' % (vr(t0), vr(vG), vr(t0)))
p('s_lshl_b32 %s, %s, 7' % (sr(sA), sr(sM)))
for jt in range(4):
    p('buffer_load_dwordx2 %s, %s, %s, %s offen offset:%d' % (vr(vXres + 2 * jt, 2), vr(t0), sr(S_X, 4), sr(sA), 32 * jt))


def dma_w64(srd, region, perm, tag):
    if perm == 'o':
        p('s_and_b32 %s, %s, 1' % (sr(sA), sr(sW)))
        p('s_lshl_b32 %s, %s, 4' % (sr(sA), sr(sA)))
        p('s_lshr_b32 %s, %s, 1' % (sr(sB), sr(sW)))
        p('s_lshl_b32 %s, %s, 3' % (sr(sB), sr(sB)))
        p('s_add_u32 %s, %s, %s' % (sr(sA), sr(sA), sr(sB)))
    else:
        p('s_lshl_b32 %s, %s, 3' % (sr(sA), sr(sW)))
    p('v_add_u32 %s, %s, %s' % (vr(vWt), sr(sA), vr(vJr)))
    p('v_lshl_add_u32 %s, %s, 10, %s' % (vr(vWt), vr(vWt), vr(vSw)))
    for G in range(4):
        setm0(sW4K, region + G * CH)
        if G:
            p('v_add_u32 %s, 0x20000, %s' % (vr(vWt), vr(vWt)))
        for s in range(4):
            dma(vWt, srd, '0' if s == 0 else sr(sC1 + s - 1), 1024 * s, tag)


RA, RB = 0, 65536
p('s_barrier')
dma_w64(S_WO, RA, 'o', 'wo')
dma_w64(S_W1, RB, 'p', 'w1')

QS = f2u(0.25 * math.log2(math.e))
for i in range(8):
    p('v_mul_f32 %s, %s, %s' % (vr(vRM + i), hx(QS), vr(vRM + i)))
col_epilogue(vAccA, vCsA, vQ)
for b in (vWb[0], vWb[1], vSb[0], vSb[1], vAccA, vAccB):
    V.rel(b, 16)
for b in (vCsA, vCsB, vSum, vGram):
    V.rel(b, 4)
V.rel(vRM, 8)
V.rel(vTrP, 3)
for b in (vXs, vXo, vWo, vVc):
    V.rel(b)

vS = [V(16), V(16)]
vP = V(8)
vO = [V(16), V(16)]
jobs = [(0, vr(vK, 4), [vr(vVf, 4), vr(vVf + 4, 4)], vr(vCd, 16), 0),
        (1, vr(vK, 4), [vr(vVf, 4), vr(vVf + 4, 4)], '0', 0),
        (1, vr(vK + 4, 4), [vr(vVf + 8, 4), vr(vVf + 12, 4)], vr(vCd, 16), 0)]
for d in range(1, 5):
    for b in (1, 0):
        for qb in (0, 1):
            c = '0'
            if d == 4:
                if b == 0 and qb == 1:
                    continue
                if (b == 1 and qb == 1) or (b == 0 and qb == 0):
                    c = vr(vCf, 16)
            jobs.append((qb, vr(vKr + 8 * (d - 1) + 4 * b, 4), [ar(16 * (d - 1) + 8 * b, 4), ar(16 * (d - 1) + 8 * b + 4, 4)], c, d))
assert len(jobs) == 18
ATT_END = 'att_end'


def s_mfma(n):
    qb, K, _, c, _ = jobs[n]
    mf32(vr(vS[n & 1], 16), K, vr(vQ + 4 * qb, 4), c)


s_mfma(0)
seen = set()
for n, (qb, K, Vv, c, d) in enumerate(jobs):
    if n > 0 and jobs[n - 1][4] != d:
        p('s_cmp_lt_u32 %s, %d' % (sr(sT), d))
        p('s_cbranch_scc1 %s' % ATT_END)
    S = vS[n & 1]
    for half in range(2):
        for r in range(8 * half, 8 * half + 8):
            p('v_exp_f32 %s, %s' % (vr(S + r), vr(S + r)))
            if half == 0 and r == 1 and n + 1 < len(jobs):
                s_mfma(n + 1)
        for i in range(4):
            p('v_cvt_pk_bf16_f32 %s, %s, %s' % (vr(vP + 4 * half + i), vr(S + 8 * half + 2 * i), vr(S + 8 * half + 2 * i + 1)))
        O = vr(vO[qb], 16)
        mf32(O, Vv[half], vr(vP + 4 * half, 4), O if (qb in seen or half) else '0')
    seen.add(qb)
p.label(ATT_END)
stamp()
LO, HI = f2u(2.0 ** -64), f2u(2.0 ** 64)
p('s_mov_b32 %s, %s' % (sr(sA), hx(LO)))
p('s_mov_b32 %s, %s' % (sr(sB), hx(HI)))
p('v_cmp_nle_f32 vcc, %s, %s' % (sr(sA), vr(vO[0] + 8)))
p('v_cmp_nge_f32 %s, %s, %s' % (sr(sC, 2), sr(sB), vr(vO[0] + 8)))
p('s_or_b64 vcc, vcc, %s' % sr(sC, 2))
p('v_cmp_nle_f32 %s, %s, %s' % (sr(sC, 2), sr(sA), vr(vO[1] + 8)))
p('s_or_b64 vcc, vcc, %s' % sr(sC, 2))
p('v_cmp_nge_f32 %s, %s, %s' % (sr(sC, 2), sr(sB), vr(vO[1] + 8)))
p('s_or_b64 vcc, vcc, %s' % sr(sC, 2))
if OPT['force_fb']:
    p('s_branch SAFE_SOFTMAX')
else:
    p('s_cbranch_vccnz SAFE_SOFTMAX')
p.label('SOFTMAX_DONE')
fb_regs = dict(S=vS[0], K=vS[1], Vv=vS[1] + 4, M=vS[1] + 12, D=vS[1] + 13, T=vS[1] + 14, P=vP, O=list(vO), Q=vQ, Vo=vVo, Qm=vQm)
p('s_lshl_b32 %s, %s, 16' % (sr(sA), sr(sT)))
p('s_lshl_b32 %s, %s, 11' % (sr(sB), sr(sM)))
p('s_add_u32 %s, %s, %s' % (sr(sA), sr(sA), sr(sB)))
p('s_lshr_b32 %s, %s, 1' % (sr(sB), sr(sW)))
p('s_lshl_b32 %s, %s, 10' % (sr(sB), sr(sB)))
p('s_add_u32 %s, %s, %s' % (sr(sA), sr(sA), sr(sB)))
p('s_and_b32 %s, %s, 1' % (sr(sB), sr(sW)))
p('s_lshl_b32 %s, %s, 9' % (sr(sB), sr(sB)))
p('s_add_u32 %s, %s, %s' % (sr(sA), sr(sA), sr(sB)))
p('s_add_u32 %s, %s, %s' % (sr(sA), sr(sA), hx(OB)))
p('s_add_u32 %s, %s, 0x8000' % (sr(sB), sr(sA)))
p('v_bfe_u32 %s, v0, 4, 1' % vr(t0))
p('v_lshrrev_b32 %s, 5, v0' % vr(t1))
p('v_lshlrev_b32 %s, 14, %s' % (vr(t0), vr(t0)))
p('v_lshl_add_u32 %s, %s, 8, %s' % (vr(t0), vr(t1), vr(t0)))
p('v_lshl_add_u32 %s, %s, 4, %s' % (vr(t0), vr(vJ), vr(t0)))
for qb in range(2):
    O = vO[qb]
    p('v_rcp_f32 %s, %s' % (vr(O + 8), vr(O + 8)))
    for i in range(4):
        p('v_pk_mul_f32 %s, %s, %s op_sel_hi:[1,0]' % (vr(O + 2 * i, 2), vr(O + 2 * i, 2), vr(O + 8, 2)))
    for i in range(4):
        p('v_cvt_pk_bf16_f32 %s, %s, %s' % (vr(vP + 4 * qb + i), vr(O + 2 * i), vr(O + 2 * i + 1)))
dual_store(['buffer_store_dwordx4 %s, %s, %s, %s offen' % (vr(vP + 4 * qb, 4), vr(t0), sr(S_WS, 4), sr(sA + qb)) for qb in range(2)], 'st')
for b in (vS[0], vS[1], vO[0], vO[1], vCd, vCf, vVf):
    V.rel(b, 16)
V.rel(vKr, 32)
for b in (vK, vQ):
    V.rel(b, 8)
for b in (vVo, vQm):
    V.rel(b)
V.rel(vP, 8)

vTr = V(4, 1)
vB = V(64)
vH = V(16)
vAcc = V(16)
vCs = V(16)
vF = V(8)
vSt = V(8)
vMu, vR = V(1), V(1)


def wa(s, jt):
    return ar((s * 4 + jt) * 4, 4)


def capture(region, s0, s1, cs=False):
    for s in range(s0, s1):
        for jt in range(4):
            for hh in range(2):
                p('ds_read_b64_tr_b16 %s, %s offset:%d' % (ar((s * 4 + jt) * 4 + 2 * hh, 2), vr(vTr + jt), CH * (s >> 2) + 8192 * hh + 1024 * (s & 3)))
        if cs and s > 0:
            cs_mfma(s - 1)
    if cs and s1 == 16:
        cs_mfma(15)


def cs_mfma(s):
    for jt in range(4):
        d = vr(vCs + 4 * jt, 4)
        mf16(d, wa(s, jt), ONES, '0' if s == 0 else d)


def set_tr(region):
    for jt in range(4):
        p('v_xor_b32 %s, %d, %s' % (vr(vTr + jt), 32 * jt, vr(vTr0)))
        if region:
            p('v_add_u32 %s, %s, %s' % (vr(vTr + jt), hx(region), vr(vTr + jt)))


def flag_store(line):
    p.waitvm('st')
    dual_store(['buffer_store_dword %s, %s, %s, %s offen offset:%d' % (vr(vZero), vr(vL0), sr(S_WS, 4), sr(sFLG), line)], 'fl')


def stat_flag(line):
    p.waitvm('st')
    dual_store(['buffer_store_dwordx2 %s, %s, %s, %s offen offset:%d' % (vr(vSt, 2), vr(vStat), sr(S_WS, 4), sr(sFLG), line)], 'fl')


def load_frags(base, voffs=None):
    for P in range(4):
        if voffs is None:
            p('s_add_u32 %s, %s, %s' % (sr(sA), sr(sTILE), hx(base + 4096 * P)))
            vo = vL16
        else:
            p('s_mov_b32 %s, %s' % (sr(sA), hx(4096 * P)))
            vo = voffs + P
        for s in range(4):
            p('buffer_load_dwordx4 %s, %s, %s, %s offen offset:%d sc1' % (vr(vB + 16 * P + 4 * s, 4), vr(vo), sr(S_WS, 4), sr(sA), 1024 * s))


def gemm64(acc):
    for s in range(16):
        for jt in range(4):
            d = vr(acc + 4 * jt, 4)
            mf16(d, wa(s, jt), vr(vB + 4 * s, 4), d)


def publish(acc, base, stats):
    for i in range(8):
        p('v_cvt_pk_bf16_f32 %s, %s, %s' % (vr(vF + i), vr(acc + 2 * i), vr(acc + 2 * i + 1)))
    p('s_lshl_b32 %s, %s, 11' % (sr(sA), sr(sM)))
    p('s_add_u32 %s, %s, %s' % (sr(sA), sr(sA), sr(sTILE)))
    p('s_add_u32 %s, %s, %s' % (sr(sB), sr(sA), hx(base)))
    dual_store(['buffer_store_dwordx4 %s, %s, %s, %s offen offset:%d' % (vr(vF + 4 * u, 4), vr(vL16), sr(S_WS, 4), sr(sB), 1024 * u) for u in range(2)], 'st')
    if stats:
        mf16(vr(vSt + 4, 4), vr(vF, 4), vr(vF, 4), '0')
        mf16(vr(vSt, 4), ONES, vr(vF, 4), '0')
        mf16(vr(vSt + 4, 4), vr(vF + 4, 4), vr(vF + 4, 4), vr(vSt + 4, 4))
        mf16(vr(vSt, 4), ONES, vr(vF + 4, 4), vr(vSt, 4))
        diag_select(vSt + 1, vSt + 4)
        p('v_and_b32 %s, -2, %s' % (vr(vSt + 1), vr(vSt + 1)))


def reduce_stats(a, b):
    p('v_add_f32 %s, %s, %s' % (vr(a), vr(a), vr(b)))
    p('v_add_f32 %s, %s, %s' % (vr(a + 1), vr(a + 1), vr(b + 1)))
    p('v_permlane32_swap_b32 %s, %s' % (vr(a), vr(a + 1)))
    p('v_add_f32 %s, %s, %s' % (vr(a), vr(a), vr(a + 1)))
    p('v_mov_b32 %s, %s' % (vr(a + 1), vr(a)))
    p('v_permlane16_swap_b32 %s, %s' % (vr(a), vr(a + 1)))
    p('v_add_f32 %s, %s, %s' % (vr(a), vr(a), vr(a + 1)))
    p('v_mov_b32 %s, %s' % (vr(a + 1), vr(a)))
    p('v_permlane32_swap_b32 %s, %s' % (vr(a), vr(a + 1)))


C0 = -2.0 * math.log2(math.e) * math.sqrt(2.0 / math.pi)
C1 = C0 * 0.044715


def gelu_consts(kk, ir, scale):
    p('v_mul_f32 %s, %s, %s' % (vr(kk), hx(f2u(C0)), vr(scale)))
    p('v_mul_f32 %s, %s, %s' % (vr(kk + 1), vr(scale), vr(scale)))
    p('v_mul_f32 %s, %s, %s' % (vr(kk + 1), vr(kk + 1), vr(kk)))
    p('v_mul_f32 %s, %s, %s' % (vr(kk + 1), hx(f2u(0.044715)), vr(kk + 1)))
    p('v_rcp_f32 %s, %s' % (vr(ir), vr(scale)))


def gelu4(a, kk, ir, tm):
    for h in (0, 2):
        p('v_pk_mul_f32 %s, %s, %s' % (vr(tm + h, 2), vr(a + h, 2), vr(a + h, 2)))
    for h in (0, 2):
        p('v_pk_fma_f32 %s, %s, %s, %s op_sel:[0,1,0] op_sel_hi:[1,1,0]' % (vr(tm + h, 2), vr(tm + h, 2), vr(kk, 2), vr(kk, 2)))
    for h in (0, 2):
        p('v_pk_mul_f32 %s, %s, %s' % (vr(tm + h, 2), vr(tm + h, 2), vr(a + h, 2)))
    for i in range(4):
        p('v_exp_f32 %s, %s' % (vr(tm + i), vr(tm + i)))
    for h in (0, 2):
        p('v_pk_fma_f32 %s, %s, %s, %s op_sel_hi:[1,0,0]' % (vr(tm + h, 2), vr(tm + h, 2), vr(ir, 2), vr(ir, 2)))
    for i in range(4):
        p('v_rcp_f32 %s, %s' % (vr(tm + i), vr(tm + i)))
    for h in (0, 2):
        p('v_pk_mul_f32 %s, %s, %s' % (vr(a + h, 2), vr(a + h, 2), vr(tm + h, 2)))


set_tr(RA)
p.waitvm('wo')
p('s_barrier')
capture(RA, 0, 8)
flag_store(L_O)
capture(RA, 8, 16)
for jt in range(4):
    for h in range(2):
        p('v_lshlrev_b32 %s, 16, %s' % (vr(vH + 4 * jt + 2 * h), vr(vXres + 2 * jt + h)))
        p('v_and_b32 %s, 0xffff0000, %s' % (vr(vH + 4 * jt + 2 * h + 1), vr(vXres + 2 * jt + h)))
V.rel(vXres, 8)
p('s_lshl_b32 %s, %s, 15' % (sr(sA), sr(sT)))
p('s_add_u32 %s, %s, %s' % (sr(sA), sr(sA), hx(FLG + L_O)))
p('v_lshlrev_b32 %s, 10, v0' % vr(t0))
p('v_mov_b32 %s, %s' % (vr(t1), hx(OOB)))
p('v_cmp_gt_u32 vcc, 32, v0')
p('v_cndmask_b32 %s, %s, %s, vcc' % (vr(vPoll), vr(t1), vr(t0)))
bar()
stamp()
poll(['buffer_load_dword %s, %s, %s, %s offen sc1' % (vr(t0), vr(vPoll), sr(S_WS, 4), sr(sA))], [t0])
load_frags(OB)
dma_w64(S_W2, RA, 'p', 'w2')
gemm64(vH)
publish(vH, HB, True)
stamp()

if OPT['stop'] > 3:
    vKK, vIr, vTm = V(2), V(2), V(4)
    set_tr(RB)
    p.waitvm('w1')
    p('s_barrier')
    capture(RB, 0, 8, cs=True)
    stat_flag(L_H)
    capture(RB, 8, 16, cs=True)
    vSp = V(1)
    p('v_lshlrev_b32 %s, 12, %s' % (vr(vSp), vr(vG)))
    p('v_lshl_add_u32 %s, %s, 3, %s' % (vr(vSp), vr(vJ), vr(vSp)))
    p('s_lshl_b32 %s, %s, 15' % (sr(sA), sr(sT)))
    p('s_lshl_b32 %s, %s, 10' % (sr(sB), sr(sW)))
    p('s_add_u32 %s, %s, %s' % (sr(sA), sr(sA), sr(sB)))
    p('s_add_u32 %s, %s, %s' % (sr(sA), sr(sA), hx(FLG)))
    p('s_add_u32 %s, %s, 0x4000' % (sr(sB), sr(sA)))
    bar()
    poll(['buffer_load_dwordx2 %s, %s, %s, %s offen offset:%d sc1' % (vr(vSt + 2 * i, 2), vr(vSp), sr(S_WS, 4), sr(sA + i), L_H) for i in range(2)],
         [vSt + 1, vSt + 3])
    load_frags(HB)
    vW3 = V(7, 1)
    SLOT = [65536, 65536 + 28672, 65536 + 2 * 28672, 0, 28672]
    p('s_lshr_b32 %s, %s, 1' % (sr(sA), sr(sW)))
    p('s_lshl_b32 %s, %s, 5' % (sr(sA), sr(sA)))
    p('s_and_b32 %s, %s, 1' % (sr(sB), sr(sW)))
    p('s_lshl_b32 %s, %s, 4' % (sr(sB), sr(sB)))
    p('s_add_u32 %s, %s, %s' % (sr(sA), sr(sA), sr(sB)))
    p('s_mul_i32 %s, %s, 448' % (sr(sB), sr(sM)))
    for a in range(7):
        p('v_add_u32 %s, %d, v0' % (vr(t0), 64 * a) if a else 'v_mov_b32 %s, v0' % vr(t0))
        p('v_mul_u32_u24 %s, 0x925, %s' % (vr(t1), vr(t0)))
        p('v_lshrrev_b32 %s, 16, %s' % (vr(t1), vr(t1)))
        p('v_mul_u32_u24 %s, 28, %s' % (vr(t2), vr(t1)))
        p('v_sub_u32 %s, %s, %s' % (vr(t0), vr(t0), vr(t2)))
        p('v_lshrrev_b32 %s, 1, %s' % (vr(t2), vr(t1)))
        p('v_and_b32 %s, 2, %s' % (vr(t2), vr(t2)))
        p('v_xor_b32 %s, %s, %s' % (vr(t0), vr(t0), vr(t2)))
        p('v_add_u32 %s, %s, %s' % (vr(t1), sr(sA), vr(t1)))
        p('v_mul_u32_u24 %s, 0xe00, %s' % (vr(t1), vr(t1)))
        p('v_lshl_add_u32 %s, %s, 4, %s' % (vr(t0), vr(t0), vr(t1)))
        p('v_add_u32 %s, %s, %s' % (vr(t0), sr(sB), vr(t0)))
        p('v_subrev_u32 %s, %d, %s' % (vr(vW3 + a), 1024 * (a & 3), vr(t0)))
    sW7K = sKVR
    p('s_mul_i32 %s, %s, 7168' % (sr(sW7K), sr(sW)))

    def dma_w3(unit, slot):
        p('s_mov_b32 %s, %s' % (sr(sA), hx(unit * 64 * 3584)))
        for a in range(7):
            if a % 4 == 0:
                setm0(sW7K, SLOT[slot] + 1024 * a)
            dma(vW3 + a, S_W3, sr(sA), 1024 * (a & 3), 'u%d' % unit)

    for un in range(3):
        dma_w3(un, un)
    reduce_stats(vSt, vSt + 2)
    mean_rstd(vMu, vR, vSt, vSt + 1)
    p('v_mul_f32 %s, %s, %s' % (vr(t0), vr(vR), vr(vR)))
    p('v_mul_f32 %s, %s, %s' % (vr(t0), vr(t0), vr(vSt + 1)))
    p('v_add_f32 %s, %s, %s' % (vr(t0), hx(EPS), vr(t0)))
    p('v_rsq_f32 %s, %s' % (vr(t0), vr(t0)))
    p('v_mul_f32 %s, %s, %s' % (vr(t0), vr(t0), vr(vR)))
    gelu_consts(vKK, vIr, t0)
    for i in range(16):
        p('v_mul_f32 %s, -%s, %s' % (vr(vAcc + i), vr(vMu), vr(vCs + i)))
    gemm64(vAcc)
    for jt in range(4):
        gelu4(vAcc + 4 * jt, vKK, vIr, vTm)
    publish(vAcc, GB, False)
    p('s_bitcmp1_b32 %s, 1' % sr(sM))
    p('s_cselect_b32 %s, 0, 3' % sr(sC))
    p('s_cselect_b32 %s, 0, 14' % sr(sD))
    p('s_cmp_eq_u32 %s, %s' % (sr(sC), sr(sW)))
    p('s_cselect_b32 %s, %s, 16' % (sr(sD), sr(sD)))
    p('v_and_b32 %s, 14, v0' % vr(t0))
    p('v_cmp_eq_u32 vcc, %s, %s' % (sr(sD), vr(t0)))
    p('v_mov_b32 %s, %s' % (vr(t1), hx(OOB)))
    p('v_cndmask_b32 %s, %s, %s, vcc' % (vr(t1), vr(t1), vr(vL16)))
    p('s_add_u32 %s, %s, %s' % (sr(sB), sr(sA), hx(GH)))
    for u in range(2):
        p('buffer_store_dwordx4 %s, %s, %s, %s offen offset:%d sc1' % (vr(vF + 4 * u, 4), vr(t1), sr(S_WS, 4), sr(sB), 1024 * u), tag='halo')
    stamp()

if OPT['stop'] > 4:
    set_tr(RA)
    p.waitvm('w2')
    p('s_barrier')
    capture(RA, 0, 8)
    flag_store(L_G)
    capture(RA, 8, 12)
    p.waitvm('halo')
    p('buffer_store_dword %s, %s, %s, %s offen offset:%d sc1' % (vr(vZero), vr(vL0), sr(S_WS, 4), sr(sFLG), L_HALO))
    capture(RA, 12, 16)
    p('v_mul_f32 %s, -%s, %s' % (vr(t0), vr(vMu), vr(vR)))
    for i in range(16):
        p('v_fma_f32 %s, %s, %s, %s' % (vr(vAcc + i), vr(vH + i), vr(vR), vr(t0)))
    p('v_and_b32 %s, 2, v0' % vr(t0))
    p('v_subrev_u32 %s, 1, %s' % (vr(t0), vr(t0)))
    p('v_cmp_gt_u32 vcc, 8, v0')
    p('v_cndmask_b32 %s, %s, %s, vcc' % (vr(t0), vr(t0), vr(vZero)))
    p('s_lshr_b32 %s, %s, 14' % (sr(sA), sr(sTILE)))
    p('v_add_u32 %s, %s, %s' % (vr(t0), sr(sA), vr(t0)))
    p('v_lshrrev_b32 %s, 2, %s' % (vr(t1), vr(t0)))
    p('v_cmp_eq_u32 vcc, %s, %s' % (sr(sT), vr(t1)))
    p('v_mov_b32 %s, %d' % (vr(t2), L_HALO))
    p('v_mov_b32 %s, %d' % (vr(t3), L_G))
    p('v_cndmask_b32 %s, %s, %s, vcc' % (vr(t2), vr(t2), vr(t3)))
    p('v_lshl_add_u32 %s, %s, 15, %s' % (vr(t2), vr(t1), vr(t2)))
    p('v_and_b32 %s, 3, %s' % (vr(t1), vr(t0)))
    p('v_lshl_add_u32 %s, %s, 10, %s' % (vr(t2), vr(t1), vr(t2)))
    p('v_and_b32 %s, 7, v0' % vr(t1))
    p('v_lshl_add_u32 %s, %s, 12, %s' % (vr(t2), vr(t1), vr(t2)))
    p('v_mov_b32 %s, %s' % (vr(t1), hx(OOB)))
    p('v_cmp_gt_u32 vcc, 0x80, %s' % vr(t0))
    p('v_cndmask_b32 %s, %s, %s, vcc' % (vr(t2), vr(t1), vr(t2)))
    p('v_cmp_gt_u32 vcc, 16, v0')
    p('v_cndmask_b32 %s, %s, %s, vcc' % (vr(vPoll), vr(t1), vr(t2)))
    vSh = V(4, 1)
    p('s_lshr_b32 %s, %s, 10' % (sr(sA), sr(sTILE)))
    for P, dl in enumerate((-1, 1, -2, 2)):
        p('v_add_u32 %s, %s, %s' % (vr(t0), sr(sA), vr(vJ)))
        p('v_add_u32 %s, %d, %s' % (vr(t0), dl, vr(t0)))
        p('v_lshrrev_b32 %s, 6, %s' % (vr(t1), vr(t0)))
        p('v_cmp_eq_u32 vcc, %s, %s' % (sr(sT), vr(t1)))
        p('v_mov_b32 %s, %s' % (vr(t2), hx(GH)))
        p('v_mov_b32 %s, %s' % (vr(t3), hx(GB)))
        p('v_cndmask_b32 %s, %s, %s, vcc' % (vr(t2), vr(t2), vr(t3)))
        p('v_lshrrev_b32 %s, 4, %s' % (vr(t1), vr(t0)))
        p('v_lshl_add_u32 %s, %s, 14, %s' % (vr(t2), vr(t1), vr(t2)))
        p('v_and_b32 %s, 15, %s' % (vr(t1), vr(t0)))
        p('v_lshl_add_u32 %s, %s, 4, %s' % (vr(t2), vr(t1), vr(t2)))
        p('v_lshl_add_u32 %s, %s, 8, %s' % (vr(t2), vr(vG), vr(t2)))
        p('v_mov_b32 %s, %s' % (vr(t1), hx(OOB)))
        p('v_cmp_gt_u32 vcc, 0x800, %s' % vr(t0))
        p('v_cndmask_b32 %s, %s, %s, vcc' % (vr(vSh + P), vr(t1), vr(t2)))
    p('s_mov_b32 %s, %s' % (sr(sA), hx(FLG)))
    bar()
    poll(['buffer_load_dword %s, %s, %s, %s offen sc1' % (vr(t0), vr(vPoll), sr(S_WS, 4), sr(sA))], [t0])
    load_frags(None, vSh)
    gemm64(vAcc)
    publish(vAcc, XB, True)
    for i in range(8):
        p('v_pk_add_f32 %s, %s, %s' % (vr(vH + 2 * i, 2), vr(vH + 2 * i, 2), vr(vAcc + 2 * i, 2)))
    V.rel(vSh, 4)
    stamp()

if OPT['stop'] > 5:
    stat_flag(L_X)
    V.rel(vB, 64)
    V.rel(vAcc, 16)
    V.rel(vCs, 16)
    V.rel(vTr, 4)
    V.rel(vF, 8)
    vA6, vC6 = V(56), V(28)
    vAa, vAb, vAt = V(2, 1), V(1), V(2, 1)
    vX6 = V(1)
    vKK2, vIr2, vMu2 = V(2), V(2), V(2)
    p('s_and_b32 %s, %s, 1' % (sr(sA), sr(sW)))
    p('v_lshrrev_b32 %s, 2, v0' % vr(t0))
    p('v_mul_u32_u24 %s, 0x1c0, %s' % (vr(t0), vr(t0)))
    p('v_and_b32 %s, 3, v0' % vr(t1))
    p('v_lshl_add_u32 %s, %s, 3, %s' % (vr(t0), vr(t1), vr(t0)))
    p('s_mul_i32 %s, %s, 224' % (sr(sB), sr(sA)))
    p('v_add_u32 %s, %s, %s' % (vr(t0), sr(sB), vr(t0)))
    p('v_and_b32 %s, 16, v0' % vr(t1))
    p('v_lshlrev_b32 %s, 1, %s' % (vr(t1), vr(t1)))
    p('s_cmp_eq_u32 %s, 0' % sr(sA))
    p('s_cselect_b32 %s, 1, -1' % sr(sB))
    p('v_mul_i32_i24 %s, %s, %s' % (vr(t1), sr(sB), vr(t1)))
    p('v_add_u32 %s, %s, %s' % (vr(vAa), vr(t0), vr(t1)))
    p('v_sub_u32 %s, %s, %s' % (vr(vAa + 1), vr(t0), vr(t1)))
    p('s_lshr_b32 %s, %s, 1' % (sr(sC), sr(sW)))
    p('s_lshl_b32 %s, %s, 15' % (sr(sB), sr(sC)))
    p('v_add_u32 %s, %s, %s' % (vr(vX6), sr(sB), vr(vL16)))
    p('s_lshl_b32 %s, %s, 15' % (sr(sA), sr(sT)))
    p('s_lshl_b32 %s, %s, 11' % (sr(sB), sr(sC)))
    p('s_add_u32 %s, %s, %s' % (sr(sA), sr(sA), sr(sB)))
    p('s_add_u32 %s, %s, %s' % (sr(sA), sr(sA), hx(FLG)))
    p('s_add_u32 %s, %s, 0x4000' % (sr(sB), sr(sA)))
    poll(['buffer_load_dwordx2 %s, %s, %s, %s offen offset:%d sc1' % (vr(vSt + 4 * tk + 2 * i, 2), vr(vSp), sr(S_WS, 4), sr(sA + i), L_X + 1024 * tk)
          for tk in range(2) for i in range(2)], [vSt + 1, vSt + 3, vSt + 5, vSt + 7])
    stamp()
    lf = p.newlabel('noinv')
    p('s_cmp_lg_u32 %s, 0' % sr(sFAST))
    p('s_cbranch_scc1 %s' % lf)
    p('buffer_inv sc1')
    p('s_waitcnt vmcnt(0)')
    p.label(lf)
    p('s_lshl_b32 %s, %s, 14' % (sr(sC), sr(sW)))
    XG = [0] * 4 + [1] * 6 + [2] * 6
    for s in range(16):
        if s % 4 == 0:
            setm0(sC, 1024 * s)
            p('s_add_u32 %s, %s, %s' % (sr(sA), sr(sTILE), hx(XB + 1024 * s)))
        dma(vL16, S_WS, sr(sA), 1024 * (s & 3), 'x%d' % XG[s], sc1=True)
    for tk in range(2):
        reduce_stats(vSt + 4 * tk, vSt + 4 * tk + 2)
        mean_rstd((vMu, vMu2)[tk], t0, vSt + 4 * tk, vSt + 4 * tk + 1)
        gelu_consts((vKK, vKK2)[tk], (vIr, vIr2)[tk], t0)
    p('v_mov_b32 %s, %s' % (vr(vMu2 + 1), vr(vMu)))
    vW4, vW4t = V(1), V(1)
    sS4 = sC3
    p('s_mul_i32 %s, %s, 224' % (sr(sA), sr(sM)))
    p('s_mul_i32 %s, %s, 56' % (sr(sB), sr(sW)))
    p('s_add_u32 %s, %s, %s' % (sr(sA), sr(sA), sr(sB)))
    p('v_add_u32 %s, %s, %s' % (vr(t0), sr(sA), vr(vJr)))
    p('v_lshlrev_b32 %s, 1, %s' % (vr(t1), vr(vJr)))
    p('v_and_b32 %s, 4, %s' % (vr(t1), vr(t1)))
    p('v_and_b32 %s, 7, v0' % vr(t2))
    p('v_xor_b32 %s, %s, %s' % (vr(t1), vr(t1), vr(t2)))
    p('v_lshlrev_b32 %s, 4, %s' % (vr(t1), vr(t1)))
    p('v_lshl_add_u32 %s, %s, 10, %s' % (vr(vW4), vr(t0), vr(t1)))
    for a in range(1, 7):
        p('s_mov_b32 %s, %s' % (sr(sS4 + a - 1), hx(8192 * a - 1024 * (a & 3))))

    def dma_w4(stage, slot):
        p('s_add_u32 %s, %s, %d' % (sr(sA), sr(sM), stage + 1))
        p('s_and_b32 %s, %s, 7' % (sr(sA), sr(sA)))
        p('s_lshl_b32 %s, %s, 7' % (sr(sA), sr(sA)))
        p('v_add_u32 %s, %s, %s' % (vr(vW4t), sr(sA), vr(vW4)))
        for a in range(7):
            if a % 4 == 0:
                setm0(sW7K, SLOT[slot] + 1024 * a)
            dma(vW4t, S_W4, '0' if a == 0 else sr(sS4 + a - 1), 1024 * (a & 3), 'v%d' % stage)

    USLOT = [0, 1, 2, 0, 1, 2, 3, 4]
    VSLOT = [0, 1, 2, 3, 4, 0, 1, 2]
    ABUF = [128, 156]

    def x6(s, tk):
        return ar((s * 2 + tk) * 4, 4)

    def w3_read(st, u):
        for hh in range(2):
            p('ds_read_b64_tr_b16 %s, %s offset:%d' % (ar(ABUF[st & 1] + 4 * u + 2 * hh, 2), vr(vAt + (u & 1)), 14336 * (st & 1) + 7168 * hh + 32 * u))

    def p6_mfma(st, u):
        A = ar(ABUF[st & 1] + 4 * u, 4)
        for tk in range(2):
            d = vr(vA6 + 8 * u + 4 * tk, 4)
            mf16(d, A, x6(st, tk), '0' if st == 0 else d)
        d = vr(vC6 + 4 * u, 4)
        mf16(d, A, ONES, '0' if st == 0 else d)

    for un in range(8):
        p.waitvm('u%d' % un, *(['x%d' % un] if un < 3 else []))
        bar()
        if un == 1:
            dma_w3(3, 0)
        if un == 2:
            dma_w3(4, 1)
        if un == 3:
            dma_w3(5, 2)
            dma_w3(6, 3)
            dma_w3(7, 4)
        if un >= 4:
            dma_w4(un - 4, VSLOT[un - 4])
        for i in range(2):
            p('v_add_u32 %s, %s, %s' % (vr(vAt + i), hx(SLOT[USLOT[un]]), vr(vAa + i)))
        if un < 3:
            xs = [s for s in range(16) if XG[s] == un]
            for s in xs[:2]:
                for tk in range(2):
                    p('ds_read_b128 %s, %s offset:%d' % (x6(s, tk), vr(vX6), 16384 * tk + 1024 * s))
        for u in range(7):
            w3_read(2 * un, u)
        if un < 3:
            for s in xs[2:]:
                for tk in range(2):
                    p('ds_read_b128 %s, %s offset:%d' % (x6(s, tk), vr(vX6), 16384 * tk + 1024 * s))
        for u in range(7):
            if un > 0:
                p6_mfma(2 * un - 1, u)
            w3_read(2 * un + 1, u)
        for u in range(7):
            p6_mfma(2 * un, u)
    for u in range(7):
        p6_mfma(15, u)
    stamp()
    p('s_barrier')
    UB = SLOT[4]
    H0, H1 = 57344, 151552
    p('s_and_b32 %s, %s, 1' % (sr(sA), sr(sW)))
    p('s_mul_i32 %s, %s, 14336' % (sr(sA), sr(sA)))
    p('s_lshr_b32 %s, %s, 1' % (sr(sB), sr(sW)))
    p('s_lshl_b32 %s, %s, 10' % (sr(sB), sr(sB)))
    p('s_add_u32 %s, %s, %s' % (sr(sA), sr(sA), sr(sB)))
    p('s_add_u32 %s, %s, %d' % (sr(sA), sr(sA), UB))
    p('v_lshrrev_b32 %s, 5, v0' % vr(t0))
    p('v_lshlrev_b32 %s, 9, %s' % (vr(t0), vr(t0)))
    p('v_lshl_add_u32 %s, %s, 4, %s' % (vr(t0), vr(vJ), vr(t0)))
    p('v_bfe_u32 %s, v0, 4, 1' % vr(t1))
    p('v_lshl_add_u32 %s, %s, 3, %s' % (vr(t0), vr(t1), vr(t0)))
    p('v_add_u32 %s, %s, %s' % (vr(vX6), sr(sA), vr(t0)))
    p('s_lshl_b32 %s, %s, 8' % (sr(sA), sr(sW)))
    p('v_lshl_add_u32 %s, %s, 4, %s' % (vr(t0), vr(vJ), sr(sA)))
    p('v_lshl_add_u32 %s, %s, 10, %s' % (vr(t0), vr(vG), vr(t0)))
    p('v_add_u32 %s, %s, %s' % (vr(t1), hx(H1), vr(t0)))
    for jt in range(4):
        if jt < 2:
            p('ds_write_b128 %s, %s offset:%d' % (vr(t0), vr(vH + 4 * jt, 4), H0 + 4096 * jt))
        else:
            p('ds_write_b128 %s, %s offset:%d' % (vr(t1), vr(vH + 4 * jt, 4), 4096 * (jt - 2)))
    vU = V(4)
    n = 0
    for u in range(7):
        for tk in range(2):
            a = vA6 + 8 * u + 4 * tk
            sel = 'op_sel:[0,1,0] op_sel_hi:[1,1,1]' if tk == 0 else 'op_sel_hi:[1,0,1]'
            for h in (0, 2):
                p('v_pk_fma_f32 %s, %s, %s, %s %s neg_lo:[0,1,0] neg_hi:[0,1,0]' % (vr(a + h, 2), vr(vC6 + 4 * u + h, 2), vr(vMu2, 2), vr(a + h, 2), sel))
            gelu4(a, (vKK, vKK2)[tk], (vIr, vIr2)[tk], vTm)
            d = vU + 2 * (n & 1)
            p('v_cvt_pk_bf16_f32 %s, %s, %s' % (vr(d), vr(a), vr(a + 1)))
            p('v_cvt_pk_bf16_f32 %s, %s, %s' % (vr(d + 1), vr(a + 2), vr(a + 3)))
            p('ds_write_b64 %s, %s offset:%d' % (vr(vX6), vr(d, 2), 2048 * u + 256 * tk))
            n += 1
    V.rel(vA6, 56)
    V.rel(vC6, 28)
    V.rel(vU, 4)
    bar()
    stamp()
    p('s_lshr_b32 %s, %s, 1' % (sr(sA), sr(sW)))
    p('s_lshl_b32 %s, %s, 10' % (sr(sB), sr(sA)))
    p('s_add_u32 %s, %s, %d' % (sr(sB), sr(sB), UB))
    p('v_add_u32 %s, %s, %s' % (vr(t0), sr(sB), vr(vL16)))
    for ft in range(14):
        p('ds_read_b128 %s, %s offset:%d' % (ar(4 * ft, 4), vr(t0), 2048 * ft))
    p('s_lshl_b32 %s, %s, 9' % (sr(sA), sr(sA)))
    p('s_bitcmp1_b32 %s, 0' % sr(sW))
    p('s_cselect_b32 %s, %s, 0' % (sr(sB), hx(H1 - H0)))
    p('s_add_u32 %s, %s, %s' % (sr(sA), sr(sA), sr(sB)))
    p('s_add_u32 %s, %s, %s' % (sr(sA), sr(sA), hx(H0)))
    p('v_and_b32 %s, 31, v0' % vr(t1))
    p('v_lshl_add_u32 %s, %s, 4, %s' % (vr(t1), vr(t1), sr(sA)))
    p('v_lshrrev_b32 %s, 5, v0' % vr(t2))
    p('v_lshl_add_u32 %s, %s, 10, %s' % (vr(t1), vr(t2), vr(t1)))
    for a in range(4):
        p('ds_read_b128 %s, %s offset:%d' % (vr(vH + 4 * a, 4), vr(t1), 2048 * a))
    vA7 = vAa
    p('v_bfe_u32 %s, v0, 2, 2' % vr(t0))
    p('v_lshl_add_u32 %s, %s, 3, %s' % (vr(t1), vr(t2), vr(t0)))
    p('v_lshlrev_b32 %s, 7, %s' % (vr(t1), vr(t1)))
    p('v_lshlrev_b32 %s, 5, %s' % (vr(t0), vr(t0)))
    p('v_and_b32 %s, 64, %s' % (vr(t0), vr(t0)))
    p('s_and_b32 %s, %s, 1' % (sr(sA), sr(sW)))
    p('s_lshl_b32 %s, %s, 6' % (sr(sA), sr(sA)))
    p('v_xor_b32 %s, %s, %s' % (vr(t0), sr(sA), vr(t0)))
    p('v_add_u32 %s, %s, %s' % (vr(t1), vr(t1), vr(t0)))
    p('v_and_b32 %s, 16, v0' % vr(t0))
    p('v_lshl_add_u32 %s, %s, 1, %s' % (vr(t1), vr(t0), vr(t1)))
    p('v_and_b32 %s, 3, v0' % vr(t0))
    p('v_lshl_add_u32 %s, %s, 3, %s' % (vr(vA7), vr(t0), vr(t1)))
    vAc7 = [V(16), V(16)]
    vPk = V(8)
    BUF7 = [64, 120]
    LAG7 = 2

    def p7_mfma(j, k):
        d = vr(vH if j == 7 else vAc7[j & 1], 16)
        mf32(d, ar(BUF7[j & 1] + 4 * k, 4), ar(4 * k, 4), '0' if (k == 0 and j < 7) else d)

    def p7_store(j):
        a = vAc7[j & 1]
        for i in range(8):
            p('v_cvt_pk_bf16_f32 %s, %s, %s' % (vr(vPk + i), vr(a + 2 * i), vr(a + 2 * i + 1)))
        p('s_add_u32 %s, %s, %d' % (sr(sA), sr(sM), j + 1))
        p('s_and_b32 %s, %s, 7' % (sr(sA), sr(sA)))
        p('s_lshl_b32 %s, %s, 16' % (sr(sA), sr(sA)))
        p('s_add_u32 %s, %s, %s' % (sr(sA), sr(sA), sr(sPS)))
        dual_store(['buffer_store_dwordx4 %s, %s, %s, %s offen offset:%d' % (vr(vPk + 4 * u, 4), vr(vL16), sr(S_WS, 4), sr(sA), 1024 * u) for u in range(2)], 'st')

    sPS = sKVO
    p('s_lshl_b32 %s, %s, 19' % (sr(sPS), sr(sT)))
    p('s_lshl_b32 %s, %s, 13' % (sr(sA), sr(sM)))
    p('s_add_u32 %s, %s, %s' % (sr(sPS), sr(sPS), sr(sA)))
    p('s_lshl_b32 %s, %s, 11' % (sr(sA), sr(sW)))
    p('s_add_u32 %s, %s, %s' % (sr(sPS), sr(sPS), sr(sA)))
    p('s_add_u32 %s, %s, %s' % (sr(sPS), sr(sPS), hx(PART)))
    for j in range(8):
        p.waitvm('v%d' % j)
        bar()
        if j < 4:
            dma_w4(j + 4, VSLOT[j + 4])
        p('v_add_u32 %s, %s, %s' % (vr(vAt), hx(SLOT[VSLOT[j]]), vr(vA7)))
        for k in range(14):
            for hh in range(2):
                p('ds_read_b64_tr_b16 %s, %s offset:%d' % (ar(BUF7[j & 1] + 4 * k + 2 * hh, 2), vr(vAt), 2048 * k + 512 * hh))
            if j > 0 and k == 5:
                for kk in range(14 - LAG7, 14):
                    p7_mfma(j - 1, kk)
        for k in range(14 - LAG7 if j < 7 else 2):
            p7_mfma(j, k)
            if j > 0 and k == 1:
                p7_store(j - 1)
    for k in range(2, 8):
        p7_mfma(7, k)
    flag_store(L_P)
    for k in range(8, 14):
        p7_mfma(7, k)
    stamp()
    vSel = V(8)
    p('v_and_b32 %s, 31, v0' % vr(t0))
    p('v_bfe_u32 %s, v0, 2, 1' % vr(t1))
    p('v_lshrrev_b32 %s, 5, v0' % vr(t2))
    p('v_cmp_eq_u32 vcc, %s, %s' % (vr(t1), vr(t2)))
    p('v_and_b32 %s, 1, v0' % vr(t1))
    p('v_lshlrev_b32 %s, 4, %s' % (vr(t1), vr(t1)))
    p('v_mov_b32 %s, 0x3f80' % vr(t2))
    p('v_lshlrev_b32 %s, %s, %s' % (vr(t1), vr(t1), vr(t2)))
    p('v_cndmask_b32 %s, %s, %s, vcc' % (vr(t1), vr(vZero), vr(t1)))
    p('v_lshrrev_b32 %s, 3, %s' % (vr(t2), vr(t0)))
    p('v_bfe_u32 %s, v0, 1, 1' % vr(t3))
    p('v_lshl_add_u32 %s, %s, 1, %s' % (vr(t2), vr(t2), vr(t3)))
    for i in range(8):
        p('v_cmp_eq_u32 vcc, %d, %s' % (i, vr(t2)))
        p('v_cndmask_b32 %s, %s, %s, vcc' % (vr(vSel + i), vr(vZero), vr(t1)))
    p('s_lshl_b32 %s, %s, 15' % (sr(sA), sr(sT)))
    p('s_lshl_b32 %s, %s, 10' % (sr(sB), sr(sW)))
    p('s_add_u32 %s, %s, %s' % (sr(sA), sr(sA), sr(sB)))
    p('s_add_u32 %s, %s, %s' % (sr(sA), sr(sA), hx(FLG + L_P)))
    p('v_lshlrev_b32 %s, 12, v0' % vr(t0))
    p('v_mov_b32 %s, %s' % (vr(t1), hx(OOB)))
    p('v_cmp_gt_u32 vcc, 8, v0')
    p('v_cndmask_b32 %s, %s, %s, vcc' % (vr(vPoll), vr(t1), vr(t0)))
    p('s_mul_i32 %s, %s, %d' % (sr(sC), sr(sM), 65536 - 8192))
    p('s_add_u32 %s, %s, %s' % (sr(sC), sr(sC), sr(sPS)))
    poll(['buffer_load_dword %s, %s, %s, %s offen sc1' % (vr(t0), vr(vPoll), sr(S_WS, 4), sr(sA))], [t0])
    vPa = V(56)
    for i in range(7):
        p('s_add_u32 %s, %s, %d' % (sr(sA), sr(sM), 7 - i))
        p('s_and_b32 %s, %s, 7' % (sr(sA), sr(sA)))
        p('s_lshl_b32 %s, %s, 13' % (sr(sA), sr(sA)))
        p('s_add_u32 %s, %s, %s' % (sr(sA), sr(sA), sr(sC)))
        for u in range(2):
            p('buffer_load_dwordx4 %s, %s, %s, %s offen offset:%d sc1' % (vr(vPa + 8 * i + 4 * u, 4), vr(vL16), sr(S_WS, 4), sr(sA), 1024 * u))
    p('s_lshl_b32 %s, %s, 6' % (sr(sA), sr(sT)))
    p('s_lshr_b32 %s, %s, 1' % (sr(sB), sr(sW)))
    p('s_lshl_b32 %s, %s, 5' % (sr(sB), sr(sB)))
    p('s_add_u32 %s, %s, %s' % (sr(sA), sr(sA), sr(sB)))
    p('v_and_b32 %s, 31, v0' % vr(t0))
    p('v_add_u32 %s, %s, %s' % (vr(t0), sr(sA), vr(t0)))
    p('v_lshlrev_b32 %s, 10, %s' % (vr(t0), vr(t0)))
    p('v_lshrrev_b32 %s, 5, v0' % vr(t1))
    p('v_lshl_add_u32 %s, %s, 4, %s' % (vr(t0), vr(t1), vr(t0)))
    p('s_lshl_b32 %s, %s, 7' % (sr(sA), sr(sM)))
    p('s_and_b32 %s, %s, 1' % (sr(sB), sr(sW)))
    p('s_lshl_b32 %s, %s, 6' % (sr(sB), sr(sB)))
    p('s_add_u32 %s, %s, %s' % (sr(sA), sr(sA), sr(sB)))
    for i in range(7):
        for u in range(2):
            mf32(vr(vH, 16), vr(vSel + 4 * u, 4), vr(vPa + 8 * i + 4 * u, 4), vr(vH, 16))
    for i in range(8):
        p('v_cvt_pk_bf16_f32 %s, %s, %s' % (vr(vPk + i), vr(vH + 2 * i), vr(vH + 2 * i + 1)))
    for u in range(2):
        p('v_permlane32_swap_b32 %s, %s' % (vr(vPk + 4 * u), vr(vPk + 4 * u + 2)))
        p('v_permlane32_swap_b32 %s, %s' % (vr(vPk + 4 * u + 1), vr(vPk + 4 * u + 3)))
        p('buffer_store_dwordx4 %s, %s, %s, %s offen offset:%d' % (vr(vPk + 4 * u, 4), vr(t0), sr(S_OUT, 4), sr(sA), 32 * u))
p('s_branch KFIN')

p.label('SAFE_SOFTMAX')
R = fb_regs


def fb_scores(qb):
    p('s_lshl_b32 %s, %s, 1' % (sr(sA), sr(sT)))
    p('s_add_u32 %s, %s, %d' % (sr(sA), sr(sA), qb))
    p('s_sub_u32 %s, %s, %s' % (sr(sA), sr(sA), sr(sE)))
    p('s_lshr_b32 %s, %s, 1' % (sr(sB), sr(sA)))
    p('s_sub_u32 %s, %s, %s' % (sr(sB), sr(sT), sr(sB)))
    p('s_mul_i32 %s, %s, %d' % (sr(sB), sr(sB), 32 * KVS))
    p('s_sub_u32 %s, %s, %s' % (sr(sB), sr(sKVO), sr(sB)))
    p('s_and_b32 %s, %s, 1' % (sr(sA), sr(sA)))
    p('s_lshl_b32 %s, %s, 10' % (sr(sC), sr(sA)))
    p('s_add_u32 %s, %s, %s' % (sr(sC), sr(sC), sr(sB)))
    p('s_mul_i32 %s, %s, 1280' % (sr(sA), sr(sA)))
    p('s_add_u32 %s, %s, %s' % (sr(sB), sr(sB), sr(sA)))
    p('buffer_load_dwordx4 %s, %s, %s, %s offen sc1' % (vr(R['K'], 4), vr(vL16), sr(S_WS, 4), sr(sC)))
    for u in range(2):
        p('buffer_load_dwordx4 %s, %s, %s, %s offen offset:%d sc1' % (vr(R['Vv'] + 4 * u, 4), vr(R['Vo']), sr(S_WS, 4), sr(sB), 2048 + 640 * u))
    mf32(vr(R['S'], 16), vr(R['K'], 4), vr(R['Q'] + 4 * qb, 4), '0')
    p('s_lshl_b32 %s, %s, 5' % (sr(sA), sr(sE)))
    p('v_add_u32 %s, %s, %s' % (vr(R['D']), sr(sA), vr(R['Qm'])))
    p('v_mov_b32 %s, 0xff800000' % vr(R['T'] + 1))
    for r in range(16):
        p('v_subrev_u32 %s, %d, %s' % (vr(R['T']), 8 * (r >> 2) + (r & 3), vr(R['D'])))
        p('v_cmp_gt_u32 vcc, 0x100, %s' % vr(R['T']))
        p('v_cndmask_b32 %s, %s, %s, vcc' % (vr(R['S'] + r), vr(R['T'] + 1), vr(R['S'] + r)))


for qb in range(2):
    p('s_lshl_b32 %s, %s, 1' % (sr(sG), sr(sT)))
    p('s_add_u32 %s, %s, %d' % (sr(sG), sr(sG), qb))
    p('s_min_u32 %s, %s, 8' % (sr(sG), sr(sG)))
    p('v_mov_b32 %s, 0xff800000' % vr(R['M']))
    p('s_mov_b32 %s, 0' % sr(sE))
    l1 = p.newlabel('fbmax')
    p.label(l1)
    fb_scores(qb)
    for r in range(16):
        p('v_max_f32 %s, %s, %s' % (vr(R['M']), vr(R['M']), vr(R['S'] + r)))
    p('s_add_u32 %s, %s, 1' % (sr(sE), sr(sE)))
    p('s_cmp_le_u32 %s, %s' % (sr(sE), sr(sG)))
    p('s_cbranch_scc1 %s' % l1)
    p('v_mov_b32 %s, %s' % (vr(R['T']), vr(R['M'])))
    p('v_permlane32_swap_b32 %s, %s' % (vr(R['T']), vr(R['M'])))
    p('v_max_f32 %s, %s, %s' % (vr(R['M']), vr(R['M']), vr(R['T'])))
    for r in range(16):
        p('v_mov_b32 %s, 0' % vr(R['O'][qb] + r))
    p('s_mov_b32 %s, 0' % sr(sE))
    l2 = p.newlabel('fbsum')
    p.label(l2)
    fb_scores(qb)
    for r in range(16):
        p('v_sub_f32 %s, %s, %s' % (vr(R['S'] + r), vr(R['S'] + r), vr(R['M'])))
        p('v_exp_f32 %s, %s' % (vr(R['S'] + r), vr(R['S'] + r)))
    for i in range(8):
        p('v_cvt_pk_bf16_f32 %s, %s, %s' % (vr(R['P'] + i), vr(R['S'] + 2 * i), vr(R['S'] + 2 * i + 1)))
    for u in range(2):
        mf32(vr(R['O'][qb], 16), vr(R['Vv'] + 4 * u, 4), vr(R['P'] + 4 * u, 4), vr(R['O'][qb], 16))
    p('s_add_u32 %s, %s, 1' % (sr(sE), sr(sE)))
    p('s_cmp_le_u32 %s, %s' % (sr(sE), sr(sG)))
    p('s_cbranch_scc1 %s' % l2)
p('s_branch SOFTMAX_DONE')
p.label('KFIN')
finish_kernel()

body = p.finish()
ref = open(os.path.join(os.path.dirname(os.path.abspath(__file__)), '..', 'cdna_kernels', NAME + '.s.ref')).read()
head = ''.join(l + '\n' for l in ref.split('\n') if l.startswith(';') and '@launch' not in l)
out = head + '; @launch grid=(256,1,1) block=(256,1,1) lds=163840\n'
out += '.amdgcn_target "amdgcn-amd-amdhsa--gfx950"\n.text\n.globl %s_kernel\n.p2align 8\n.type %s_kernel,@function\n%s_kernel:\n' % (NAME, NAME, NAME)
out += body
out += '''.section .rodata,"a"
.p2align 6
.amdhsa_kernel %s_kernel
  .amdhsa_next_free_vgpr 512
  .amdhsa_next_free_sgpr 102
  .amdhsa_accum_offset 256
  .amdhsa_group_segment_fixed_size 0
  .amdhsa_kernarg_size 88
  .amdhsa_user_sgpr_count 2
  .amdhsa_user_sgpr_kernarg_segment_ptr 1
  .amdhsa_system_sgpr_workgroup_id_x 1
.end_amdhsa_kernel
''' % NAME
dst = OPT.get('out') or os.path.join(os.path.dirname(os.path.abspath(__file__)), '..', 'cdna_kernels', NAME + '.s')
open(dst, 'w').write(out)
print('wrote', dst, 'instructions', sum(1 for x in p.ins if x.kind == 'ins'), 'nops', p.total_nops)
```

```python
import sys, math, struct, os
sys.path.insert(0, os.path.dirname(os.path.abspath(__file__)))
from asmlib import Prog, vr, ar, sr

NAME = 'sequential_preLN__sliding_block__mixer_s_mlp__prompt'
OPT = dict(stop=99, stamps=False, force_slow=False, force_fb=False)
for a in sys.argv[1:]:
    if '=' in a:
        k, v = a.split('=')
        OPT[k] = int(v) if v.lstrip('-').isdigit() else v

KV, KVS = 0x0000000, 5120
FLG = 0x0500000
OB, HB, GB, XB, GH = 0x0600000, 0x0800000, 0x0A00000, 0x0C00000, 0x0E00000
PART = 0x1000000
STAMP = 0x2000000
WS_BYTES = 268435456
OOB = 0x40000000
L_KV, L_O, L_H, L_G, L_HALO, L_X, L_P = [128 * i for i in range(7)]
SPIN = 1 << 18


def f2u(x):
    return struct.unpack('<I', struct.pack('<f', x))[0]


def hx(x):
    return '0x%x' % (x & 0xffffffff)


S_X, S_WQ, S_WO, S_W1, S_W2, S_W3, S_W4, S_OUT, S_DBG, S_WS = [4 + 4 * i for i in range(10)]
sT, sM, sW, sFAST, sXCC, sW4K = 44, 45, 46, 47, 48, 49
sC3 = 50
sC1 = 53
sFLG = 56
sSPIN = 57
sKVR = 58
sKVO = 62
sTILE = 63
sM1, sM2, sM3 = 64, 66, 68
sA, sB, sC, sD, sE, sF, sG = 70, 71, 72, 73, 74, 75, 76
sXS = 77
sSTAMP = 78


class Alloc:
    def __init__(self, n):
        self.free = [True] * n

    def __call__(self, n=1, al=None):
        al = al or (4 if n >= 4 else (2 if n == 2 else 1))
        for b in range(0, len(self.free) - n + 1, al):
            if all(self.free[b:b + n]):
                for i in range(b, b + n):
                    self.free[i] = False
                return b
        raise RuntimeError('out of registers for %d' % n)

    def rel(self, b, n=1):
        for i in range(b, b + n):
            assert not self.free[i], ('double free', i)
            self.free[i] = True

    def used(self):
        return sum(1 for f in self.free if not f)


p = Prog()
V = Alloc(256)
nstamp = [0]


def stamp():
    if OPT['stamps']:
        if nstamp[0]:
            p('s_mov_b32 %s, s100' % sr(sSTAMP + nstamp[0] - 1))
        p('s_memtime s[100:101]')
        nstamp[0] += 1
        assert nstamp[0] <= 22


def mf16(d, a, b, c):
    p('v_mfma_f32_16x16x32_bf16 %s, %s, %s, %s' % (d, a, b, c))


def mf32(d, a, b, c):
    p('v_mfma_f32_32x32x16_bf16 %s, %s, %s, %s' % (d, a, b, c))


def bar():
    p('s_waitcnt lgkmcnt(0)')
    p('s_barrier')


def dma(voff, srd, soff, imm, tag, sc1=False):
    p('buffer_load_dwordx4 %s, %s, %s offen offset:%d%s lds' % (vr(voff), sr(srd, 4), soff, imm, ' sc1' if sc1 else ''), tag=tag)


def setm0(base_sreg, const):
    if base_sreg is None:
        p('s_mov_b32 m0, %s' % hx(const))
    else:
        p('s_add_u32 m0, %s, %s' % (sr(base_sreg), hx(const)))


def dual_store(stores, tag):
    ls, le = p.newlabel('slow'), p.newlabel('join')
    p('s_cmp_eq_u32 %s, 0' % sr(sFAST))
    p('s_cbranch_scc1 %s' % ls)
    for s in stores:
        p(s, tag=tag)
    p('s_branch %s' % le)
    p.label(ls)
    for s in stores:
        p(s + ' sc1', tag=tag)
    p.label(le)


def poll(loads, checks):
    lp, ld = p.newlabel('poll'), p.newlabel('polled')
    p('s_mov_b32 %s, %s' % (sr(sSPIN), hx(SPIN)))
    p.label(lp)
    for l in loads:
        p(l)
    if len(checks) == 1:
        p('v_cmp_eq_u32 vcc, -1, %s' % vr(checks[0]))
    else:
        p('v_cmp_eq_u32 vcc, -1, %s' % vr(checks[0]))
        for c in checks[1:]:
            p('v_cmp_eq_u32 %s, -1, %s' % (sr(sF - 1, 2), vr(c)))
            p('s_or_b64 vcc, vcc, %s' % sr(sF - 1, 2))
    p('s_cbranch_vccz %s' % ld)
    p('s_sub_u32 %s, %s, 1' % (sr(sSPIN), sr(sSPIN)))
    p('s_cbranch_scc0 %s' % lp)
    p.label(ld)


def finish_kernel():
    if OPT.get('fixrt'):
        p('s_mov_b32 %s, %d' % (sr(sSPIN), 1 << 20))
        p.label('FIXL')
        p('s_memrealtime s[96:97]')
        p('s_sub_u32 s96, s96, s98')
        p('s_cmp_ge_u32 s96, %d' % OPT['fixrt'])
        p('s_cbranch_scc1 FIXD')
        p('s_sub_u32 %s, %s, 1' % (sr(sSPIN), sr(sSPIN)))
        p('s_cbranch_scc0 FIXL')
        p.label('FIXD')
    if OPT.get('pad'):
        stamp()
        p('s_mov_b32 %s, %d' % (sr(sSPIN), OPT['pad']))
        p.label('PADL')
        for i in range(16):
            p('v_exp_f32 v%d, v%d' % (100 + i, 100 + i))
        p('s_sub_u32 %s, %s, 1' % (sr(sSPIN), sr(sSPIN)))
        p('s_cbranch_scc0 PADL')
    if OPT['stamps']:
        stamp()
        t = V(1)
        a = V(1)
        p('s_mov_b32 %s, s100' % sr(sSTAMP + nstamp[0] - 1))
        p('s_lshl_b32 %s, s2, 9' % sr(sA))
        p('s_lshl_b32 %s, %s, 7' % (sr(sB), sr(sW)))
        p('s_add_u32 %s, %s, %s' % (sr(sA), sr(sA), sr(sB)))
        p('s_add_u32 %s, %s, %s' % (sr(sA), sr(sA), hx(STAMP)))
        for i in range(nstamp[0]):
            p('v_mov_b32 %s, %s' % (vr(t), sr(sSTAMP + i)))
            p('buffer_store_dword %s, %s, %s, %s offen offset:%d' % (vr(t), vr(vL0), sr(S_WS, 4), sr(sA), 4 * i))
        p('v_mov_b32 %s, %s' % (vr(t), sr(sFAST)))
        p('buffer_store_dword %s, %s, %s, %s offen offset:%d' % (vr(t), vr(vL0), sr(S_WS, 4), sr(sA), 124))
    p('s_waitcnt vmcnt(0)')
    p.label('KEND')
    p('s_endpgm')


p('s_cmp_ge_u32 s2, 256')
p('s_cbranch_scc1 KEND')
if OPT.get('fixrt'):
    p('s_memrealtime s[98:99]')
for srd, off in ((S_X, 0), (S_WQ, 8), (S_WS, 80), (S_WO, 16), (S_W1, 32), (S_W2, 40), (S_W3, 48), (S_W4, 56), (S_OUT, 64), (S_DBG, 72)):
    p('s_load_dwordx2 %s, s[0:1], %d' % (sr(srd, 2), off))
stamp()
vLane, vL16, vL0, vZero = V(1), V(1), V(1), V(1)
assert vLane == 0
vG, vJ = V(1), V(1)
t0, t1, t2, t3 = V(1), V(1), V(1), V(1)
p('v_lshrrev_b32 %s, 6, v0' % vr(t0))
p('v_and_b32 v0, 63, v0')
p('v_readfirstlane_b32 %s, %s' % (sr(sW), vr(t0)))
for srd, n in ((S_X, 2048 * 1024), (S_WQ, 512 * 3072), (S_WO, 512 * 1024), (S_W1, 512 * 1024), (S_W2, 512 * 1024),
               (S_W3, 512 * 3584), (S_W4, 1792 * 1024), (S_OUT, 2048 * 1024), (S_DBG, 256), (S_WS, WS_BYTES)):
    p('s_mov_b32 %s, %s' % (sr(srd + 2), hx(n)))
    p('s_mov_b32 %s, 0x20000' % sr(srd + 3))
p('s_and_b32 %s, s2, 7' % sr(sXS))
p('s_lshr_b32 %s, s2, 6' % sr(sA))
p('s_lshl_b32 %s, %s, 2' % (sr(sT), sr(sXS)))
p('s_add_u32 %s, %s, %s' % (sr(sT), sr(sT), sr(sA)))
p('s_bfe_u32 %s, s2, 0x30003' % sr(sM))
p('s_lshl_b32 %s, %s, 12' % (sr(sW4K), sr(sW)))
p('s_getreg_b32 %s, hwreg(HW_REG_XCC_ID,0,4)' % sr(sXCC))
for s in (1, 2, 3):
    p('s_mov_b32 %s, %s' % (sr(sC3 + s - 1), hx(s * (32 * 3072 - 1024))))
    p('s_mov_b32 %s, %s' % (sr(sC1 + s - 1), hx(s * (32 * 1024 - 1024))))
p('s_lshl_b32 %s, %s, 3' % (sr(sA), sr(sT)))
p('s_add_u32 %s, %s, %s' % (sr(sA), sr(sA), sr(sM)))
p('s_lshl_b32 %s, %s, 2' % (sr(sA), sr(sA)))
p('s_add_u32 %s, %s, %s' % (sr(sA), sr(sA), sr(sW)))
p('s_lshl_b32 %s, %s, 10' % (sr(sFLG), sr(sA)))
p('s_add_u32 %s, %s, %s' % (sr(sFLG), sr(sFLG), hx(FLG)))
p('s_mul_i32 %s, %s, %d' % (sr(sKVO), sr(sA), KVS))
p('s_lshl_b32 %s, %s, 2' % (sr(sTILE), sr(sT)))
p('s_add_u32 %s, %s, %s' % (sr(sTILE), sr(sTILE), sr(sW)))
p('s_lshl_b32 %s, %s, 14' % (sr(sTILE), sr(sTILE)))
p('v_lshlrev_b32 %s, 4, v0' % vr(vL16))
p('v_lshrrev_b32 %s, 4, v0' % vr(vG))
p('v_and_b32 %s, 15, v0' % vr(vJ))

vXo, vWo, vWt = V(1), V(1), V(1)
p('s_lshr_b32 %s, %s, 10' % (sr(sA), sr(sTILE)))
p('v_add_u32 %s, %s, %s' % (vr(t0), sr(sA), vr(vJ)))
p('v_lshlrev_b32 %s, 10, %s' % (vr(t0), vr(t0)))
p('v_lshl_add_u32 %s, %s, 4, %s' % (vr(vXo), vr(vG), vr(t0)))
vSw, vJr = V(1), V(1)
p('v_lshrrev_b32 %s, 3, v0' % vr(vJr))
p('v_and_b32 %s, 6, %s' % (vr(t0), vr(vJr)))
p('v_and_b32 %s, 7, v0' % vr(t1))
p('v_xor_b32 %s, %s, %s' % (vr(t0), vr(t0), vr(t1)))
p('v_lshlrev_b32 %s, 4, %s' % (vr(vSw), vr(t0)))
p('s_lshl_b32 %s, %s, 7' % (sr(sB), sr(sM)))
p('v_add_u32 %s, %s, %s' % (vr(vSw), sr(sB), vr(vSw)))
p('s_and_b32 %s, %s, 1' % (sr(sA), sr(sW)))
p('s_lshl_b32 %s, %s, 4' % (sr(sA), sr(sA)))
p('s_lshr_b32 %s, %s, 1' % (sr(sC), sr(sW)))
p('s_lshl_b32 %s, %s, 2' % (sr(sD), sr(sC)))
p('s_add_u32 %s, %s, %s' % (sr(sD), sr(sD), sr(sA)))
p('v_lshrrev_b32 %s, 5, v0' % vr(t0))
p('v_and_b32 %s, 3, %s' % (vr(t1), vr(vJr)))
p('v_lshl_add_u32 %s, %s, 3, %s' % (vr(t0), vr(t0), vr(t1)))
p('v_add_u32 %s, %s, %s' % (vr(t0), sr(sD), vr(t0)))
p('v_mul_u32_u24 %s, 0xc00, %s' % (vr(t0), vr(t0)))
p('v_add_u32 %s, %s, %s' % (vr(vWo), vr(t0), vr(vSw)))
vClr = V(4)
for i in range(4):
    p('v_mov_b32 %s, -1' % vr(vClr + i))
p('buffer_store_dwordx4 %s, %s, %s, %s offen sc1' % (vr(vClr, 4), vr(vL16), sr(S_WS, 4), sr(sFLG)), tag='clr')

CH = 16384
PASS_COL = [1024, 2048, 0]
WCH = [[4, 5, 6, 7], [8, 9, 0, 4], [1, 5, 2, 6]]


def dma_x(G):
    for s in range(4):
        imm = 256 * G + 64 * s
        setm0(sW4K, G * CH + 1024 * s - imm)
        dma(vXo, S_X, '0', imm, 'g%d' % G)


def dma_wq(ps, G):
    setm0(sW4K, WCH[ps][G] * CH)
    p('v_add_u32 %s, %s, %s' % (vr(vWt), hx(128 * G * 3072 + PASS_COL[ps]), vr(vWo)))
    for s in range(4):
        dma(vWt, S_WQ, '0' if s == 0 else sr(sC3 + s - 1), 1024 * s, 'g%d' % (4 * ps + G))


for G in range(4):
    dma_x(G)
    dma_wq(0, G)
dma_wq(1, 0)
dma_wq(1, 1)
V.rel(vClr, 4)

p('v_mov_b32 %s, 0' % vr(vZero))
p('v_mov_b32 %s, %s' % (vr(vL0), hx(OOB)))
p('v_cmp_eq_u32 vcc, 0, v0')
p('v_cndmask_b32 %s, %s, %s, vcc' % (vr(vL0), vr(vL0), vr(vZero)))
vOnes = V(4)
for i in range(4):
    p('v_mov_b32 %s, 0x3f803f80' % vr(vOnes + i))
ONES = vr(vOnes, 4)
p('s_mov_b32 %s, 0x22222222' % sr(sM1))
p('s_mov_b32 %s, 0x22222222' % sr(sM1 + 1))
p('s_mov_b32 %s, 0x44444444' % sr(sM2))
p('s_mov_b32 %s, 0x44444444' % sr(sM2 + 1))
p('s_mov_b32 %s, 0x88888888' % sr(sM3))
p('s_mov_b32 %s, 0x88888888' % sr(sM3 + 1))
vTr0 = V(1)
p('v_bfe_u32 %s, v0, 2, 3' % vr(t0))
p('v_lshrrev_b32 %s, 1, %s' % (vr(t1), vr(t0)))
p('v_lshlrev_b32 %s, 5, %s' % (vr(t1), vr(t1)))
p('v_lshl_add_u32 %s, %s, 7, %s' % (vr(t1), vr(t0), vr(t1)))
p('v_and_b32 %s, 3, v0' % vr(t0))
p('v_lshl_add_u32 %s, %s, 3, %s' % (vr(t1), vr(t0), vr(t1)))
p('v_lshrrev_b32 %s, 5, v0' % vr(t0))
p('v_lshl_add_u32 %s, %s, 12, %s' % (vr(vTr0), vr(t0), vr(t1)))
vTrP = V(3, 1)
p('s_lshl_b32 %s, %s, 5' % (sr(sA), sr(sW)))
p('v_xor_b32 %s, %s, %s' % (vr(vTrP), sr(sA), vr(vTr0)))
p('v_add_u32 %s, 0x10000, %s' % (vr(vTrP + 1), vr(vTrP)))
p('v_add_u32 %s, 0x20000, %s' % (vr(vTrP + 2), vr(vTrP)))
vXs = V(1)
p('v_add_u32 %s, %s, %s' % (vr(vXs), sr(sW4K), vr(vL16)))
vStat = V(1)
p('v_lshrrev_b32 %s, 2, %s' % (vr(t0), vr(vJ)))
p('v_cmp_eq_u32 vcc, %s, %s' % (vr(t0), vr(vG)))
p('v_lshlrev_b32 %s, 3, %s' % (vr(t1), vr(vJ)))
p('v_mov_b32 %s, %s' % (vr(vStat), hx(OOB)))
p('v_cndmask_b32 %s, %s, %s, vcc' % (vr(vStat), vr(vStat), vr(t1)))
vVo, vVc = V(1), V(1)
p('v_lshrrev_b32 %s, 5, v0' % vr(t0))
p('v_lshl_add_u32 %s, %s, 4, %s' % (vr(t0), vr(t0), vr(vJ)))
p('v_lshlrev_b32 %s, 4, %s' % (vr(t0), vr(t0)))
p('v_and_b32 %s, 11, v0' % vr(t1))
p('v_cmp_eq_u32 vcc, 0, %s' % vr(t1))
p('v_mov_b32 %s, %s' % (vr(t2), hx(OOB)))
p('v_mov_b32 %s, 0x200' % vr(t3))
p('v_cndmask_b32 %s, %s, %s, vcc' % (vr(t2), vr(t2), vr(t3)))
p('v_cndmask_b32 %s, %s, %s, vcc' % (vr(vVc), vr(vZero), vr(vOnes)))
p('v_and_b32 %s, 16, v0' % vr(t1))
p('v_cmp_eq_u32 vcc, 0, %s' % vr(t1))
p('v_cndmask_b32 %s, %s, %s, vcc' % (vr(vVo), vr(t2), vr(t0)))
vCd, vCf = V(16), V(16)
NEG = f2u(-1e30)
p('v_and_b32 %s, 31, v0' % vr(t0))
p('v_lshrrev_b32 %s, 5, v0' % vr(t1))
p('v_lshlrev_b32 %s, 2, %s' % (vr(t1), vr(t1)))
vQm = V(1)
p('v_sub_u32 %s, %s, %s' % (vr(vQm), vr(t0), vr(t1)))
p('v_mov_b32 %s, %s' % (vr(t2), hx(NEG)))
for r in range(16):
    p('v_cmp_le_i32 vcc, %d, %s' % (8 * (r >> 2) + (r & 3), vr(vQm)))
    p('v_cndmask_b32 %s, %s, %s, vcc' % (vr(vCd + r), vr(t2), vr(vZero)))
    p('v_cndmask_b32 %s, %s, %s, vcc' % (vr(vCf + r), vr(vZero), vr(t2)))
vPoll = V(1)
for d in range(1, 5):
    p('s_sub_u32 %s, %s, %d' % (sr(sA), sr(sKVO), d * 32 * KVS))
    p('s_cmp_ge_u32 %s, %d' % (sr(sT), d))
    p('s_cselect_b32 %s, %s, %s' % (sr(sKVR + d - 1), sr(sA), sr(sKVO)))
p('v_add_u32 %s, 1, v0' % vr(t0))
p('v_cmp_ge_u32 vcc, %s, %s' % (sr(sT), vr(t0)))
p('v_cndmask_b32 %s, %s, %s, vcc' % (vr(t0), vr(vZero), vr(t0)))
p('v_lshlrev_b32 %s, 15, %s' % (vr(t0), vr(t0)))
p('v_sub_u32 %s, %s, %s' % (vr(t0), sr(sFLG), vr(t0)))
p('v_cmp_gt_u32 vcc, 4, v0')
p('v_mov_b32 %s, %s' % (vr(vPoll), hx(OOB)))
p('v_cndmask_b32 %s, %s, %s, vcc' % (vr(vPoll), vr(vPoll), vr(t0)))

LAG = 1
vWb = [V(16), V(16)]
vSb = [V(16), V(16)]
vAccA, vAccB = V(16), V(16)
vCsA, vCsB = V(4), V(4)
vSum, vGram = V(4), V(4)
vRM = V(8)
vK, vVf, vQ = V(8), V(16), V(8)
STAT_LDS = 3 * CH


def xa(s, u):
    return ar((s * 4 + u) * 4, 4)


def p1_reads(k):
    ps, G = k >> 2, k & 3
    base = WCH[ps][G] * CH
    for s in range(4):
        if ps == 0:
            for u in range(4):
                p('ds_read_b128 %s, %s offset:%d' % (xa(4 * G + s, u), vr(vL16), G * CH + 4096 * u + 1024 * s))
        for hh in range(2):
            a = base + 8192 * hh + 1024 * s
            p('ds_read_b64_tr_b16 %s, %s offset:%d' % (vr(vWb[k & 1] + 4 * s + 2 * hh, 2), vr(vTrP + (a >> 16)), a & 0xffff))
        if ps == 0:
            p('ds_read_b128 %s, %s offset:%d' % (vr(vSb[k & 1] + 4 * s, 4), vr(vXs), G * CH + 1024 * s))


def p1_mfma(k, s):
    ps, G = k >> 2, k & 3
    st = 4 * G + s
    W = vr(vWb[k & 1] + 4 * s, 4)
    acc, cs = (vAccB, vCsB) if ps == 1 else (vAccA, vCsA)
    for u in range(4):
        d = vr(acc + 4 * u, 4)
        c = '0' if st == 0 else d
        if ps == 1:
            mf16(d, xa(st, u), W, c)
        else:
            mf16(d, W, xa(st, u), c)
    d = vr(cs, 4)
    c = '0' if st == 0 else d
    if ps == 1:
        mf16(d, ONES, W, c)
    else:
        mf16(d, W, ONES, c)
    if ps == 0:
        X = vr(vSb[k & 1] + 4 * s, 4)
        mf16(vr(vSum, 4), ONES, X, '0' if st == 0 else vr(vSum, 4))
        mf16(vr(vGram, 4), X, X, '0' if st == 0 else vr(vGram, 4))


def diag_select(dst, g):
    p('v_cndmask_b32 %s, %s, %s, %s' % (vr(dst), vr(g), vr(g + 1), sr(sM1, 2)))
    p('v_cndmask_b32 %s, %s, %s, %s' % (vr(dst), vr(dst), vr(g + 2), sr(sM2, 2)))
    p('v_cndmask_b32 %s, %s, %s, %s' % (vr(dst), vr(dst), vr(g + 3), sr(sM3, 2)))


EPS = f2u(1e-5)
INV_D = f2u(1.0 / 512)


def mean_rstd(mu, rs, s, ss, var=None):
    var = var if var is not None else ss
    p('v_mul_f32 %s, %s, %s' % (vr(mu), hx(INV_D), vr(s)))
    p('v_mul_f32 %s, %s, %s' % (vr(var), hx(INV_D), vr(ss)))
    p('v_fma_f32 %s, -%s, %s, %s' % (vr(var), vr(mu), vr(mu), vr(var)))
    p('v_max_f32 %s, 0, %s' % (vr(var), vr(var)))
    p('v_add_f32 %s, %s, %s' % (vr(rs), hx(EPS), vr(var)))
    p('v_rsq_f32 %s, %s' % (vr(rs), vr(rs)))


def p1_stats():
    a = V(2)
    diag_select(t0, vGram)
    mean_rstd(t1, a, vSum, t0)
    p('v_mul_f32 %s, %s, %s' % (vr(a + 1), vr(t1), vr(a)))
    p('s_lshl_b32 %s, %s, 7' % (sr(sA), sr(sW)))
    p('s_add_u32 %s, %s, %d' % (sr(sA), sr(sA), STAT_LDS))
    p('v_lshl_add_u32 %s, %s, 3, %s' % (vr(t0), vr(vJ), sr(sA)))
    p('s_mov_b32 exec_lo, 0x00f0000f')
    p('s_mov_b32 exec_hi, 0xf0000f00')
    p('ds_write_b64 %s, %s' % (vr(t0), vr(a, 2)))
    p('s_mov_b64 exec, -1')
    V.rel(a, 2)


def col_epilogue(acc, cs, dst):
    for u in range(4):
        R, M = vRM + 2 * u, vRM + 2 * u + 1
        for r in range(4):
            p('v_mul_f32 %s, %s, %s' % (vr(t0 + r), vr(M), vr(cs + r)))
        for r in range(4):
            p('v_fma_f32 %s, %s, %s, -%s' % (vr(t0 + r), vr(acc + 4 * u + r), vr(R), vr(t0 + r)))
        d = dst + 4 * (u >> 1) + 2 * (u & 1)
        p('v_cvt_pk_bf16_f32 %s, %s, %s' % (vr(d), vr(t0), vr(t1)))
        p('v_cvt_pk_bf16_f32 %s, %s, %s' % (vr(d + 1), vr(t2), vr(t3)))
    for b in range(2):
        p('v_permlane16_swap_b32 %s, %s' % (vr(dst + 4 * b), vr(dst + 4 * b + 2)))
        p('v_permlane16_swap_b32 %s, %s' % (vr(dst + 4 * b + 1), vr(dst + 4 * b + 3)))


assert t1 == t0 + 1 and t2 == t0 + 2 and t3 == t0 + 3
vRow = vSb[0]
assert vSb[1] == vSb[0] + 16
vHello = V(1)

for k in range(12):
    p.waitvm('g%d' % k)
    bar()
    if k == 0:
        stamp()
        lh = p.newlabel('nohello')
        p('s_cmp_lg_u32 %s, 0' % sr(sW))
        p('s_cbranch_scc1 %s' % lh)
        p('s_or_b32 %s, %s, 0x80' % (sr(sA), sr(sXCC)))
        p('v_mov_b32 %s, %s' % (vr(t0), sr(sA)))
        p('buffer_store_byte %s, %s, %s, s2 offen sc1' % (vr(t0), vr(vL0), sr(S_DBG, 4)))
        p.label(lh)
    if k == 1:
        dma_wq(1, 2)
        dma_wq(1, 3)
    if k == 2:
        dma_wq(2, 0)
        dma_wq(2, 1)
    if k == 3:
        dma_wq(2, 2)
        dma_wq(2, 3)
    if k == 5:
        p('v_lshlrev_b32 %s, 3, %s' % (vr(t0), vr(vJ)))
        for u in range(4):
            p('ds_read_b64 %s, %s offset:%d' % (vr(vRM + 2 * u, 2), vr(t0), STAT_LDS + 128 * u))
    if k == 7:
        p('v_lshlrev_b32 %s, 5, %s' % (vr(t0), vr(vG)))
        for u in range(4):
            for h in range(2):
                p('ds_read_b128 %s, %s offset:%d' % (vr(vRow + 8 * u + 4 * h, 4), vr(t0), STAT_LDS + 128 * u + 16 * h))
    p1_reads(k)
    if k > 0:
        for s in range(4 - LAG, 4):
            p1_mfma(k - 1, s)
    if k == 4:
        stamp()
        p1_stats()
    for s in range(4 - LAG):
        p1_mfma(k, s)
    if k == 5:
        col_epilogue(vAccA, vCsA, vK)
        for b in range(2):
            p('buffer_store_dwordx4 %s, %s, %s, %s offen offset:%d sc1' % (vr(vK + 4 * b, 4), vr(vL16), sr(S_WS, 4), sr(sKVO), 1024 * b), tag='kv')
    if k == 8:
        for u in range(4):
            for r in range(4):
                R = vRow + 8 * u + 2 * r
                p('v_mul_f32 %s, %s, %s' % (vr(t0 + r), vr(R + 1), vr(vCsB)))
            for r in range(4):
                R = vRow + 8 * u + 2 * r
                p('v_fma_f32 %s, %s, %s, -%s' % (vr(t0 + r), vr(vAccB + 4 * u + r), vr(R), vr(t0 + r)))
            d = vVf + 4 * u
            p('v_mov_b32 %s, %s' % (vr(d + 2), vr(vVc)))
            p('v_mov_b32 %s, %s' % (vr(d + 3), vr(vVc)))
            p('v_cvt_pk_bf16_f32 %s, %s, %s' % (vr(d), vr(t0), vr(t1)))
            p('v_cvt_pk_bf16_f32 %s, %s, %s' % (vr(d + 1), vr(t2), vr(t3)))
            p('v_permlane16_swap_b32 %s, %s' % (vr(d), vr(d + 2)))
            p('v_permlane16_swap_b32 %s, %s' % (vr(d + 1), vr(d + 3)))
            p('v_permlane32_swap_b32 %s, %s' % (vr(d), vr(d + 2)))
            p('v_permlane32_swap_b32 %s, %s' % (vr(d + 1), vr(d + 3)))
            p('buffer_store_dwordx4 %s, %s, %s, %s offen offset:%d sc1' % (vr(d, 4), vr(vVo), sr(S_WS, 4), sr(sKVO), 2048 + 640 * u), tag='kv')
    if k == 9:
        p('v_lshlrev_b32 %s, 2, v0' % vr(t0))
        p('buffer_load_dword %s, %s, %s, 0 offen sc1' % (vr(vHello), vr(t0), sr(S_DBG, 4)))
    if k == 10:
        p.waitvm('kv')
        p('buffer_store_dword %s, %s, %s, %s offen offset:%d sc1' % (vr(vZero), vr(vL0), sr(S_WS, 4), sr(sFLG), L_KV))
for s in range(4 - LAG, 4):
    p1_mfma(11, s)
stamp()
lp, ld = p.newlabel('hello'), p.newlabel('helloed')
p('s_mov_b32 %s, %s' % (sr(sSPIN), hx(SPIN)))
p.label(lp)
p('v_and_b32 %s, 0x80808080, %s' % (vr(t1), vr(vHello)))
p('v_cmp_ne_u32 vcc, 0x80808080, %s' % vr(t1))
p('s_cbranch_vccz %s' % ld)
p('v_lshlrev_b32 %s, 2, v0' % vr(t0))
p('buffer_load_dword %s, %s, %s, 0 offen sc1' % (vr(vHello), vr(t0), sr(S_DBG, 4)))
p('s_sub_u32 %s, %s, 1' % (sr(sSPIN), sr(sSPIN)))
p('s_cbranch_scc0 %s' % lp)
p.label(ld)
p('s_and_b32 %s, %s, 3' % (sr(sA), sr(sXS)))
p('s_lshl_b32 %s, %s, 3' % (sr(sA), sr(sA)))
p('v_bfe_u32 %s, %s, %s, 4' % (vr(t1), vr(vHello), sr(sA)))
p('v_cmp_ne_u32 vcc, %s, %s' % (sr(sXCC), vr(t1)))
p('s_lshr_b32 %s, %s, 2' % (sr(sA), sr(sXS)))
p('s_and_b32 %s, %s, 3' % (sr(sB), sr(sT)))
p('s_lshl_b32 %s, %s, 4' % (sr(sB), sr(sB)))
p('s_add_u32 %s, %s, %s' % (sr(sA), sr(sA), sr(sB)))
p('s_mov_b32 %s, 0x5555' % sr(sC))
p('s_mov_b32 %s, 0' % sr(sD))
p('s_lshl_b64 %s, %s, %s' % (sr(sC, 2), sr(sC, 2), sr(sA)))
p('s_and_b64 %s, %s, vcc' % (sr(sC, 2), sr(sC, 2)))
p('s_cselect_b32 %s, 0, %d' % (sr(sFAST), 0 if OPT['force_slow'] else 1))
V.rel(vHello)

vKr = V(32)
poll(['buffer_load_dword %s, %s, %s, 0 offen sc1' % (vr(t0), vr(vPoll), sr(S_WS, 4))], [t0])
stamp()
for d in range(1, 5):
    for b in (1, 0):
        p('buffer_load_dwordx4 %s, %s, %s, %s offen offset:%d sc1' % (vr(vKr + 8 * (d - 1) + 4 * b, 4), vr(vL16), sr(S_WS, 4), sr(sKVR + d - 1), 1024 * b))
        for u in (2 * b, 2 * b + 1):
            p('buffer_load_dwordx4 %s, %s, %s, %s offen offset:%d sc1' % (ar(16 * (d - 1) + 4 * u, 4), vr(vVo), sr(S_WS, 4), sr(sKVR + d - 1), 2048 + 640 * u))
vXres = V(8)
p('s_lshr_b32 %s, %s, 10' % (sr(sA), sr(sTILE)))
p('v_add_u32 %s, %s, %s' % (vr(t0), sr(sA), vr(vJ)))
p('v_lshlrev_b32 %s, 10, %s' % (vr(t0), vr(t0)))
p('v_lshl_add_u32 %s, %s, 3, %s' % (vr(t0), vr(vG), vr(t0)))
p('s_lshl_b32 %s, %s, 7' % (sr(sA), sr(sM)))
for jt in range(4):
    p('buffer_load_dwordx2 %s, %s, %s, %s offen offset:%d' % (vr(vXres + 2 * jt, 2), vr(t0), sr(S_X, 4), sr(sA), 32 * jt))


def dma_w64(srd, region, perm, tag):
    if perm == 'o':
        p('s_and_b32 %s, %s, 1' % (sr(sA), sr(sW)))
        p('s_lshl_b32 %s, %s, 4' % (sr(sA), sr(sA)))
        p('s_lshr_b32 %s, %s, 1' % (sr(sB), sr(sW)))
        p('s_lshl_b32 %s, %s, 3' % (sr(sB), sr(sB)))
        p('s_add_u32 %s, %s, %s' % (sr(sA), sr(sA), sr(sB)))
    else:
        p('s_lshl_b32 %s, %s, 3' % (sr(sA), sr(sW)))
    p('v_add_u32 %s, %s, %s' % (vr(vWt), sr(sA), vr(vJr)))
    p('v_lshl_add_u32 %s, %s, 10, %s' % (vr(vWt), vr(vWt), vr(vSw)))
    for G in range(4):
        setm0(sW4K, region + G * CH)
        if G:
            p('v_add_u32 %s, 0x20000, %s' % (vr(vWt), vr(vWt)))
        for s in range(4):
            dma(vWt, srd, '0' if s == 0 else sr(sC1 + s - 1), 1024 * s, tag)


RA, RB = 0, 65536
p('s_barrier')
dma_w64(S_WO, RA, 'o', 'wo')
dma_w64(S_W1, RB, 'p', 'w1')

QS = f2u(0.25 * math.log2(math.e))
for i in range(8):
    p('v_mul_f32 %s, %s, %s' % (vr(vRM + i), hx(QS), vr(vRM + i)))
col_epilogue(vAccA, vCsA, vQ)
for b in (vWb[0], vWb[1], vSb[0], vSb[1], vAccA, vAccB):
    V.rel(b, 16)
for b in (vCsA, vCsB, vSum, vGram):
    V.rel(b, 4)
V.rel(vRM, 8)
V.rel(vTrP, 3)
for b in (vXs, vXo, vWo, vVc):
    V.rel(b)

vS = [V(16), V(16)]
vP = V(8)
vO = [V(16), V(16)]
jobs = [(0, vr(vK, 4), [vr(vVf, 4), vr(vVf + 4, 4)], vr(vCd, 16), 0),
        (1, vr(vK, 4), [vr(vVf, 4), vr(vVf + 4, 4)], '0', 0),
        (1, vr(vK + 4, 4), [vr(vVf + 8, 4), vr(vVf + 12, 4)], vr(vCd, 16), 0)]
for d in range(1, 5):
    for b in (1, 0):
        for qb in (0, 1):
            c = '0'
            if d == 4:
                if b == 0 and qb == 1:
                    continue
                if (b == 1 and qb == 1) or (b == 0 and qb == 0):
                    c = vr(vCf, 16)
            jobs.append((qb, vr(vKr + 8 * (d - 1) + 4 * b, 4), [ar(16 * (d - 1) + 8 * b, 4), ar(16 * (d - 1) + 8 * b + 4, 4)], c, d))
assert len(jobs) == 18
ATT_END = 'att_end'


def s_mfma(n):
    qb, K, _, c, _ = jobs[n]
    mf32(vr(vS[n & 1], 16), K, vr(vQ + 4 * qb, 4), c)


s_mfma(0)
seen = set()
for n, (qb, K, Vv, c, d) in enumerate(jobs):
    if n > 0 and jobs[n - 1][4] != d:
        p('s_cmp_lt_u32 %s, %d' % (sr(sT), d))
        p('s_cbranch_scc1 %s' % ATT_END)
    S = vS[n & 1]
    for half in range(2):
        for r in range(8 * half, 8 * half + 8):
            p('v_exp_f32 %s, %s' % (vr(S + r), vr(S + r)))
            if half == 0 and r == 1 and n + 1 < len(jobs):
                s_mfma(n + 1)
        for i in range(4):
            p('v_cvt_pk_bf16_f32 %s, %s, %s' % (vr(vP + 4 * half + i), vr(S + 8 * half + 2 * i), vr(S + 8 * half + 2 * i + 1)))
        O = vr(vO[qb], 16)
        mf32(O, Vv[half], vr(vP + 4 * half, 4), O if (qb in seen or half) else '0')
    seen.add(qb)
p.label(ATT_END)
stamp()
LO, HI = f2u(2.0 ** -64), f2u(2.0 ** 64)
p('s_mov_b32 %s, %s' % (sr(sA), hx(LO)))
p('s_mov_b32 %s, %s' % (sr(sB), hx(HI)))
p('v_cmp_nle_f32 vcc, %s, %s' % (sr(sA), vr(vO[0] + 8)))
p('v_cmp_nge_f32 %s, %s, %s' % (sr(sC, 2), sr(sB), vr(vO[0] + 8)))
p('s_or_b64 vcc, vcc, %s' % sr(sC, 2))
p('v_cmp_nle_f32 %s, %s, %s' % (sr(sC, 2), sr(sA), vr(vO[1] + 8)))
p('s_or_b64 vcc, vcc, %s' % sr(sC, 2))
p('v_cmp_nge_f32 %s, %s, %s' % (sr(sC, 2), sr(sB), vr(vO[1] + 8)))
p('s_or_b64 vcc, vcc, %s' % sr(sC, 2))
if OPT['force_fb']:
    p('s_branch SAFE_SOFTMAX')
else:
    p('s_cbranch_vccnz SAFE_SOFTMAX')
p.label('SOFTMAX_DONE')
fb_regs = dict(S=vS[0], K=vS[1], Vv=vS[1] + 4, M=vS[1] + 12, D=vS[1] + 13, T=vS[1] + 14, P=vP, O=list(vO), Q=vQ, Vo=vVo, Qm=vQm)
p('s_lshl_b32 %s, %s, 16' % (sr(sA), sr(sT)))
p('s_lshl_b32 %s, %s, 11' % (sr(sB), sr(sM)))
p('s_add_u32 %s, %s, %s' % (sr(sA), sr(sA), sr(sB)))
p('s_lshr_b32 %s, %s, 1' % (sr(sB), sr(sW)))
p('s_lshl_b32 %s, %s, 10' % (sr(sB), sr(sB)))
p('s_add_u32 %s, %s, %s' % (sr(sA), sr(sA), sr(sB)))
p('s_and_b32 %s, %s, 1' % (sr(sB), sr(sW)))
p('s_lshl_b32 %s, %s, 9' % (sr(sB), sr(sB)))
p('s_add_u32 %s, %s, %s' % (sr(sA), sr(sA), sr(sB)))
p('s_add_u32 %s, %s, %s' % (sr(sA), sr(sA), hx(OB)))
p('s_add_u32 %s, %s, 0x8000' % (sr(sB), sr(sA)))
p('v_bfe_u32 %s, v0, 4, 1' % vr(t0))
p('v_lshrrev_b32 %s, 5, v0' % vr(t1))
p('v_lshlrev_b32 %s, 14, %s' % (vr(t0), vr(t0)))
p('v_lshl_add_u32 %s, %s, 8, %s' % (vr(t0), vr(t1), vr(t0)))
p('v_lshl_add_u32 %s, %s, 4, %s' % (vr(t0), vr(vJ), vr(t0)))
for qb in range(2):
    O = vO[qb]
    p('v_rcp_f32 %s, %s' % (vr(O + 8), vr(O + 8)))
    for i in range(4):
        p('v_pk_mul_f32 %s, %s, %s op_sel_hi:[1,0]' % (vr(O + 2 * i, 2), vr(O + 2 * i, 2), vr(O + 8, 2)))
    for i in range(4):
        p('v_cvt_pk_bf16_f32 %s, %s, %s' % (vr(vP + 4 * qb + i), vr(O + 2 * i), vr(O + 2 * i + 1)))
dual_store(['buffer_store_dwordx4 %s, %s, %s, %s offen' % (vr(vP + 4 * qb, 4), vr(t0), sr(S_WS, 4), sr(sA + qb)) for qb in range(2)], 'st')
for b in (vS[0], vS[1], vO[0], vO[1], vCd, vCf, vVf):
    V.rel(b, 16)
V.rel(vKr, 32)
for b in (vK, vQ):
    V.rel(b, 8)
for b in (vVo, vQm):
    V.rel(b)
V.rel(vP, 8)

vTr = V(4, 1)
vB = V(64)
vH = V(16)
vAcc = V(16)
vCs = V(16)
vF = V(8)
vSt = V(8)
vMu, vR = V(1), V(1)


def wa(s, jt):
    return ar((s * 4 + jt) * 4, 4)


def capture(region, s0, s1, cs=False):
    for s in range(s0, s1):
        for jt in range(4):
            for hh in range(2):
                p('ds_read_b64_tr_b16 %s, %s offset:%d' % (ar((s * 4 + jt) * 4 + 2 * hh, 2), vr(vTr + jt), CH * (s >> 2) + 8192 * hh + 1024 * (s & 3)))
        if cs and s > 0:
            cs_mfma(s - 1)
    if cs and s1 == 16:
        cs_mfma(15)


def cs_mfma(s):
    for jt in range(4):
        d = vr(vCs + 4 * jt, 4)
        mf16(d, wa(s, jt), ONES, '0' if s == 0 else d)


def set_tr(region):
    for jt in range(4):
        p('v_xor_b32 %s, %d, %s' % (vr(vTr + jt), 32 * jt, vr(vTr0)))
        if region:
            p('v_add_u32 %s, %s, %s' % (vr(vTr + jt), hx(region), vr(vTr + jt)))


def flag_store(line):
    p.waitvm('st')
    dual_store(['buffer_store_dword %s, %s, %s, %s offen offset:%d' % (vr(vZero), vr(vL0), sr(S_WS, 4), sr(sFLG), line)], 'fl')


def stat_flag(line):
    p.waitvm('st')
    dual_store(['buffer_store_dwordx2 %s, %s, %s, %s offen offset:%d' % (vr(vSt, 2), vr(vStat), sr(S_WS, 4), sr(sFLG), line)], 'fl')


def load_frags(base, voffs=None):
    for P in range(4):
        if voffs is None:
            p('s_add_u32 %s, %s, %s' % (sr(sA), sr(sTILE), hx(base + 4096 * P)))
            vo = vL16
        else:
            p('s_mov_b32 %s, %s' % (sr(sA), hx(4096 * P)))
            vo = voffs + P
        for s in range(4):
            p('buffer_load_dwordx4 %s, %s, %s, %s offen offset:%d sc1' % (vr(vB + 16 * P + 4 * s, 4), vr(vo), sr(S_WS, 4), sr(sA), 1024 * s))


def gemm64(acc):
    for s in range(16):
        for jt in range(4):
            d = vr(acc + 4 * jt, 4)
            mf16(d, wa(s, jt), vr(vB + 4 * s, 4), d)


def publish(acc, base, stats):
    for i in range(8):
        p('v_cvt_pk_bf16_f32 %s, %s, %s' % (vr(vF + i), vr(acc + 2 * i), vr(acc + 2 * i + 1)))
    p('s_lshl_b32 %s, %s, 11' % (sr(sA), sr(sM)))
    p('s_add_u32 %s, %s, %s' % (sr(sA), sr(sA), sr(sTILE)))
    p('s_add_u32 %s, %s, %s' % (sr(sB), sr(sA), hx(base)))
    dual_store(['buffer_store_dwordx4 %s, %s, %s, %s offen offset:%d' % (vr(vF + 4 * u, 4), vr(vL16), sr(S_WS, 4), sr(sB), 1024 * u) for u in range(2)], 'st')
    if stats:
        mf16(vr(vSt + 4, 4), vr(vF, 4), vr(vF, 4), '0')
        mf16(vr(vSt, 4), ONES, vr(vF, 4), '0')
        mf16(vr(vSt + 4, 4), vr(vF + 4, 4), vr(vF + 4, 4), vr(vSt + 4, 4))
        mf16(vr(vSt, 4), ONES, vr(vF + 4, 4), vr(vSt, 4))
        diag_select(vSt + 1, vSt + 4)
        p('v_and_b32 %s, -2, %s' % (vr(vSt + 1), vr(vSt + 1)))


def reduce_stats(a, b):
    p('v_add_f32 %s, %s, %s' % (vr(a), vr(a), vr(b)))
    p('v_add_f32 %s, %s, %s' % (vr(a + 1), vr(a + 1), vr(b + 1)))
    p('v_permlane32_swap_b32 %s, %s' % (vr(a), vr(a + 1)))
    p('v_add_f32 %s, %s, %s' % (vr(a), vr(a), vr(a + 1)))
    p('v_mov_b32 %s, %s' % (vr(a + 1), vr(a)))
    p('v_permlane16_swap_b32 %s, %s' % (vr(a), vr(a + 1)))
    p('v_add_f32 %s, %s, %s' % (vr(a), vr(a), vr(a + 1)))
    p('v_mov_b32 %s, %s' % (vr(a + 1), vr(a)))
    p('v_permlane32_swap_b32 %s, %s' % (vr(a), vr(a + 1)))


C0 = -2.0 * math.log2(math.e) * math.sqrt(2.0 / math.pi)
C1 = C0 * 0.044715


def gelu_consts(kk, ir, scale):
    p('v_mul_f32 %s, %s, %s' % (vr(kk), hx(f2u(C0)), vr(scale)))
    p('v_mul_f32 %s, %s, %s' % (vr(kk + 1), vr(scale), vr(scale)))
    p('v_mul_f32 %s, %s, %s' % (vr(kk + 1), vr(kk + 1), vr(kk)))
    p('v_mul_f32 %s, %s, %s' % (vr(kk + 1), hx(f2u(0.044715)), vr(kk + 1)))
    p('v_rcp_f32 %s, %s' % (vr(ir), vr(scale)))


def gelu4(a, kk, ir, tm):
    for h in (0, 2):
        p('v_pk_mul_f32 %s, %s, %s' % (vr(tm + h, 2), vr(a + h, 2), vr(a + h, 2)))
    for h in (0, 2):
        p('v_pk_fma_f32 %s, %s, %s, %s op_sel:[0,1,0] op_sel_hi:[1,1,0]' % (vr(tm + h, 2), vr(tm + h, 2), vr(kk, 2), vr(kk, 2)))
    for h in (0, 2):
        p('v_pk_mul_f32 %s, %s, %s' % (vr(tm + h, 2), vr(tm + h, 2), vr(a + h, 2)))
    for i in range(4):
        p('v_exp_f32 %s, %s' % (vr(tm + i), vr(tm + i)))
    for h in (0, 2):
        p('v_pk_fma_f32 %s, %s, %s, %s op_sel_hi:[1,0,0]' % (vr(tm + h, 2), vr(tm + h, 2), vr(ir, 2), vr(ir, 2)))
    for i in range(4):
        p('v_rcp_f32 %s, %s' % (vr(tm + i), vr(tm + i)))
    for h in (0, 2):
        p('v_pk_mul_f32 %s, %s, %s' % (vr(a + h, 2), vr(a + h, 2), vr(tm + h, 2)))


set_tr(RA)
p.waitvm('wo')
p('s_barrier')
capture(RA, 0, 8)
flag_store(L_O)
capture(RA, 8, 16)
for jt in range(4):
    for h in range(2):
        p('v_lshlrev_b32 %s, 16, %s' % (vr(vH + 4 * jt + 2 * h), vr(vXres + 2 * jt + h)))
        p('v_and_b32 %s, 0xffff0000, %s' % (vr(vH + 4 * jt + 2 * h + 1), vr(vXres + 2 * jt + h)))
V.rel(vXres, 8)
p('s_lshl_b32 %s, %s, 15' % (sr(sA), sr(sT)))
p('s_add_u32 %s, %s, %s' % (sr(sA), sr(sA), hx(FLG + L_O)))
p('v_lshlrev_b32 %s, 10, v0' % vr(t0))
p('v_mov_b32 %s, %s' % (vr(t1), hx(OOB)))
p('v_cmp_gt_u32 vcc, 32, v0')
p('v_cndmask_b32 %s, %s, %s, vcc' % (vr(vPoll), vr(t1), vr(t0)))
bar()
stamp()
poll(['buffer_load_dword %s, %s, %s, %s offen sc1' % (vr(t0), vr(vPoll), sr(S_WS, 4), sr(sA))], [t0])
load_frags(OB)
dma_w64(S_W2, RA, 'p', 'w2')
gemm64(vH)
publish(vH, HB, True)
stamp()

if OPT['stop'] > 3:
    vKK, vIr, vTm = V(2), V(2), V(4)
    set_tr(RB)
    p.waitvm('w1')
    p('s_barrier')
    capture(RB, 0, 8, cs=True)
    stat_flag(L_H)
    capture(RB, 8, 16, cs=True)
    vSp = V(1)
    p('v_lshlrev_b32 %s, 12, %s' % (vr(vSp), vr(vG)))
    p('v_lshl_add_u32 %s, %s, 3, %s' % (vr(vSp), vr(vJ), vr(vSp)))
    p('s_lshl_b32 %s, %s, 15' % (sr(sA), sr(sT)))
    p('s_lshl_b32 %s, %s, 10' % (sr(sB), sr(sW)))
    p('s_add_u32 %s, %s, %s' % (sr(sA), sr(sA), sr(sB)))
    p('s_add_u32 %s, %s, %s' % (sr(sA), sr(sA), hx(FLG)))
    p('s_add_u32 %s, %s, 0x4000' % (sr(sB), sr(sA)))
    bar()
    poll(['buffer_load_dwordx2 %s, %s, %s, %s offen offset:%d sc1' % (vr(vSt + 2 * i, 2), vr(vSp), sr(S_WS, 4), sr(sA + i), L_H) for i in range(2)],
         [vSt + 1, vSt + 3])
    load_frags(HB)
    vW3 = V(7, 1)
    SLOT = [65536, 65536 + 28672, 65536 + 2 * 28672, 0, 28672]
    p('s_lshr_b32 %s, %s, 1' % (sr(sA), sr(sW)))
    p('s_lshl_b32 %s, %s, 5' % (sr(sA), sr(sA)))
    p('s_and_b32 %s, %s, 1' % (sr(sB), sr(sW)))
    p('s_lshl_b32 %s, %s, 4' % (sr(sB), sr(sB)))
    p('s_add_u32 %s, %s, %s' % (sr(sA), sr(sA), sr(sB)))
    p('s_mul_i32 %s, %s, 448' % (sr(sB), sr(sM)))
    for a in range(7):
        p('v_add_u32 %s, %d, v0' % (vr(t0), 64 * a) if a else 'v_mov_b32 %s, v0' % vr(t0))
        p('v_mul_u32_u24 %s, 0x925, %s' % (vr(t1), vr(t0)))
        p('v_lshrrev_b32 %s, 16, %s' % (vr(t1), vr(t1)))
        p('v_mul_u32_u24 %s, 28, %s' % (vr(t2), vr(t1)))
        p('v_sub_u32 %s, %s, %s' % (vr(t0), vr(t0), vr(t2)))
        p('v_lshrrev_b32 %s, 1, %s' % (vr(t2), vr(t1)))
        p('v_and_b32 %s, 2, %s' % (vr(t2), vr(t2)))
        p('v_xor_b32 %s, %s, %s' % (vr(t0), vr(t0), vr(t2)))
        p('v_add_u32 %s, %s, %s' % (vr(t1), sr(sA), vr(t1)))
        p('v_mul_u32_u24 %s, 0xe00, %s' % (vr(t1), vr(t1)))
        p('v_lshl_add_u32 %s, %s, 4, %s' % (vr(t0), vr(t0), vr(t1)))
        p('v_add_u32 %s, %s, %s' % (vr(t0), sr(sB), vr(t0)))
        p('v_subrev_u32 %s, %d, %s' % (vr(vW3 + a), 1024 * (a & 3), vr(t0)))
    sW7K = sKVR
    p('s_mul_i32 %s, %s, 7168' % (sr(sW7K), sr(sW)))

    def dma_w3(unit, slot):
        p('s_mov_b32 %s, %s' % (sr(sA), hx(unit * 64 * 3584)))
        for a in range(7):
            if a % 4 == 0:
                setm0(sW7K, SLOT[slot] + 1024 * a)
            dma(vW3 + a, S_W3, sr(sA), 1024 * (a & 3), 'u%d' % unit)

    for un in range(3):
        dma_w3(un, un)
    reduce_stats(vSt, vSt + 2)
    mean_rstd(vMu, vR, vSt, vSt + 1)
    p('v_mul_f32 %s, %s, %s' % (vr(t0), vr(vR), vr(vR)))
    p('v_mul_f32 %s, %s, %s' % (vr(t0), vr(t0), vr(vSt + 1)))
    p('v_add_f32 %s, %s, %s' % (vr(t0), hx(EPS), vr(t0)))
    p('v_rsq_f32 %s, %s' % (vr(t0), vr(t0)))
    p('v_mul_f32 %s, %s, %s' % (vr(t0), vr(t0), vr(vR)))
    gelu_consts(vKK, vIr, t0)
    for i in range(16):
        p('v_mul_f32 %s, -%s, %s' % (vr(vAcc + i), vr(vMu), vr(vCs + i)))
    gemm64(vAcc)
    for jt in range(4):
        gelu4(vAcc + 4 * jt, vKK, vIr, vTm)
    publish(vAcc, GB, False)
    p('s_bitcmp1_b32 %s, 1' % sr(sM))
    p('s_cselect_b32 %s, 0, 3' % sr(sC))
    p('s_cselect_b32 %s, 0, 14' % sr(sD))
    p('s_cmp_eq_u32 %s, %s' % (sr(sC), sr(sW)))
    p('s_cselect_b32 %s, %s, 16' % (sr(sD), sr(sD)))
    p('v_and_b32 %s, 14, v0' % vr(t0))
    p('v_cmp_eq_u32 vcc, %s, %s' % (sr(sD), vr(t0)))
    p('v_mov_b32 %s, %s' % (vr(t1), hx(OOB)))
    p('v_cndmask_b32 %s, %s, %s, vcc' % (vr(t1), vr(t1), vr(vL16)))
    p('s_add_u32 %s, %s, %s' % (sr(sB), sr(sA), hx(GH)))
    for u in range(2):
        p('buffer_store_dwordx4 %s, %s, %s, %s offen offset:%d sc1' % (vr(vF + 4 * u, 4), vr(t1), sr(S_WS, 4), sr(sB), 1024 * u), tag='halo')
    stamp()

if OPT['stop'] > 4:
    set_tr(RA)
    p.waitvm('w2')
    p('s_barrier')
    capture(RA, 0, 8)
    flag_store(L_G)
    capture(RA, 8, 12)
    p.waitvm('halo')
    p('buffer_store_dword %s, %s, %s, %s offen offset:%d sc1' % (vr(vZero), vr(vL0), sr(S_WS, 4), sr(sFLG), L_HALO))
    capture(RA, 12, 16)
    p('v_mul_f32 %s, -%s, %s' % (vr(t0), vr(vMu), vr(vR)))
    for i in range(16):
        p('v_fma_f32 %s, %s, %s, %s' % (vr(vAcc + i), vr(vH + i), vr(vR), vr(t0)))
    p('v_and_b32 %s, 2, v0' % vr(t0))
    p('v_subrev_u32 %s, 1, %s' % (vr(t0), vr(t0)))
    p('v_cmp_gt_u32 vcc, 8, v0')
    p('v_cndmask_b32 %s, %s, %s, vcc' % (vr(t0), vr(t0), vr(vZero)))
    p('s_lshr_b32 %s, %s, 14' % (sr(sA), sr(sTILE)))
    p('v_add_u32 %s, %s, %s' % (vr(t0), sr(sA), vr(t0)))
    p('v_lshrrev_b32 %s, 2, %s' % (vr(t1), vr(t0)))
    p('v_cmp_eq_u32 vcc, %s, %s' % (sr(sT), vr(t1)))
    p('v_mov_b32 %s, %d' % (vr(t2), L_HALO))
    p('v_mov_b32 %s, %d' % (vr(t3), L_G))
    p('v_cndmask_b32 %s, %s, %s, vcc' % (vr(t2), vr(t2), vr(t3)))
    p('v_lshl_add_u32 %s, %s, 15, %s' % (vr(t2), vr(t1), vr(t2)))
    p('v_and_b32 %s, 3, %s' % (vr(t1), vr(t0)))
    p('v_lshl_add_u32 %s, %s, 10, %s' % (vr(t2), vr(t1), vr(t2)))
    p('v_and_b32 %s, 7, v0' % vr(t1))
    p('v_lshl_add_u32 %s, %s, 12, %s' % (vr(t2), vr(t1), vr(t2)))
    p('v_mov_b32 %s, %s' % (vr(t1), hx(OOB)))
    p('v_cmp_gt_u32 vcc, 0x80, %s' % vr(t0))
    p('v_cndmask_b32 %s, %s, %s, vcc' % (vr(t2), vr(t1), vr(t2)))
    p('v_cmp_gt_u32 vcc, 16, v0')
    p('v_cndmask_b32 %s, %s, %s, vcc' % (vr(vPoll), vr(t1), vr(t2)))
    vSh = V(4, 1)
    p('s_lshr_b32 %s, %s, 10' % (sr(sA), sr(sTILE)))
    for P, dl in enumerate((-1, 1, -2, 2)):
        p('v_add_u32 %s, %s, %s' % (vr(t0), sr(sA), vr(vJ)))
        p('v_add_u32 %s, %d, %s' % (vr(t0), dl, vr(t0)))
        p('v_lshrrev_b32 %s, 6, %s' % (vr(t1), vr(t0)))
        p('v_cmp_eq_u32 vcc, %s, %s' % (sr(sT), vr(t1)))
        p('v_mov_b32 %s, %s' % (vr(t2), hx(GH)))
        p('v_mov_b32 %s, %s' % (vr(t3), hx(GB)))
        p('v_cndmask_b32 %s, %s, %s, vcc' % (vr(t2), vr(t2), vr(t3)))
        p('v_lshrrev_b32 %s, 4, %s' % (vr(t1), vr(t0)))
        p('v_lshl_add_u32 %s, %s, 14, %s' % (vr(t2), vr(t1), vr(t2)))
        p('v_and_b32 %s, 15, %s' % (vr(t1), vr(t0)))
        p('v_lshl_add_u32 %s, %s, 4, %s' % (vr(t2), vr(t1), vr(t2)))
        p('v_lshl_add_u32 %s, %s, 8, %s' % (vr(t2), vr(vG), vr(t2)))
        p('v_mov_b32 %s, %s' % (vr(t1), hx(OOB)))
        p('v_cmp_gt_u32 vcc, 0x800, %s' % vr(t0))
        p('v_cndmask_b32 %s, %s, %s, vcc' % (vr(vSh + P), vr(t1), vr(t2)))
    p('s_mov_b32 %s, %s' % (sr(sA), hx(FLG)))
    bar()
    poll(['buffer_load_dword %s, %s, %s, %s offen sc1' % (vr(t0), vr(vPoll), sr(S_WS, 4), sr(sA))], [t0])
    load_frags(None, vSh)
    gemm64(vAcc)
    publish(vAcc, XB, True)
    for i in range(8):
        p('v_pk_add_f32 %s, %s, %s' % (vr(vH + 2 * i, 2), vr(vH + 2 * i, 2), vr(vAcc + 2 * i, 2)))
    V.rel(vSh, 4)
    stamp()

if OPT['stop'] > 5:
    stat_flag(L_X)
    V.rel(vB, 64)
    V.rel(vAcc, 16)
    V.rel(vCs, 16)
    V.rel(vTr, 4)
    V.rel(vF, 8)
    vA6, vC6 = V(56), V(28)
    vAa, vAb, vAt = V(2, 1), V(1), V(2, 1)
    vX6 = V(1)
    vKK2, vIr2, vMu2 = V(2), V(2), V(2)
    p('s_and_b32 %s, %s, 1' % (sr(sA), sr(sW)))
    p('v_lshrrev_b32 %s, 2, v0' % vr(t0))
    p('v_mul_u32_u24 %s, 0x1c0, %s' % (vr(t0), vr(t0)))
    p('v_and_b32 %s, 3, v0' % vr(t1))
    p('v_lshl_add_u32 %s, %s, 3, %s' % (vr(t0), vr(t1), vr(t0)))
    p('s_mul_i32 %s, %s, 224' % (sr(sB), sr(sA)))
    p('v_add_u32 %s, %s, %s' % (vr(t0), sr(sB), vr(t0)))
    p('v_and_b32 %s, 16, v0' % vr(t1))
    p('v_lshlrev_b32 %s, 1, %s' % (vr(t1), vr(t1)))
    p('s_cmp_eq_u32 %s, 0' % sr(sA))
    p('s_cselect_b32 %s, 1, -1' % sr(sB))
    p('v_mul_i32_i24 %s, %s, %s' % (vr(t1), sr(sB), vr(t1)))
    p('v_add_u32 %s, %s, %s' % (vr(vAa), vr(t0), vr(t1)))
    p('v_sub_u32 %s, %s, %s' % (vr(vAa + 1), vr(t0), vr(t1)))
    p('s_lshr_b32 %s, %s, 1' % (sr(sC), sr(sW)))
    p('s_lshl_b32 %s, %s, 15' % (sr(sB), sr(sC)))
    p('v_add_u32 %s, %s, %s' % (vr(vX6), sr(sB), vr(vL16)))
    p('s_lshl_b32 %s, %s, 15' % (sr(sA), sr(sT)))
    p('s_lshl_b32 %s, %s, 11' % (sr(sB), sr(sC)))
    p('s_add_u32 %s, %s, %s' % (sr(sA), sr(sA), sr(sB)))
    p('s_add_u32 %s, %s, %s' % (sr(sA), sr(sA), hx(FLG)))
    p('s_add_u32 %s, %s, 0x4000' % (sr(sB), sr(sA)))
    poll(['buffer_load_dwordx2 %s, %s, %s, %s offen offset:%d sc1' % (vr(vSt + 4 * tk + 2 * i, 2), vr(vSp), sr(S_WS, 4), sr(sA + i), L_X + 1024 * tk)
          for tk in range(2) for i in range(2)], [vSt + 1, vSt + 3, vSt + 5, vSt + 7])
    stamp()
    lf = p.newlabel('noinv')
    p('s_cmp_lg_u32 %s, 0' % sr(sFAST))
    p('s_cbranch_scc1 %s' % lf)
    p('buffer_inv sc1')
    p('s_waitcnt vmcnt(0)')
    p.label(lf)
    p('s_lshl_b32 %s, %s, 14' % (sr(sC), sr(sW)))
    XG = [0] * 4 + [1] * 6 + [2] * 6
    for s in range(16):
        if s % 4 == 0:
            setm0(sC, 1024 * s)
            p('s_add_u32 %s, %s, %s' % (sr(sA), sr(sTILE), hx(XB + 1024 * s)))
        dma(vL16, S_WS, sr(sA), 1024 * (s & 3), 'x%d' % XG[s], sc1=True)
    for tk in range(2):
        reduce_stats(vSt + 4 * tk, vSt + 4 * tk + 2)
        mean_rstd((vMu, vMu2)[tk], t0, vSt + 4 * tk, vSt + 4 * tk + 1)
        gelu_consts((vKK, vKK2)[tk], (vIr, vIr2)[tk], t0)
    p('v_mov_b32 %s, %s' % (vr(vMu2 + 1), vr(vMu)))
    vW4, vW4t = V(1), V(1)
    sS4 = sC3
    p('s_mul_i32 %s, %s, 224' % (sr(sA), sr(sM)))
    p('s_mul_i32 %s, %s, 56' % (sr(sB), sr(sW)))
    p('s_add_u32 %s, %s, %s' % (sr(sA), sr(sA), sr(sB)))
    p('v_add_u32 %s, %s, %s' % (vr(t0), sr(sA), vr(vJr)))
    p('v_lshlrev_b32 %s, 1, %s' % (vr(t1), vr(vJr)))
    p('v_and_b32 %s, 4, %s' % (vr(t1), vr(t1)))
    p('v_and_b32 %s, 7, v0' % vr(t2))
    p('v_xor_b32 %s, %s, %s' % (vr(t1), vr(t1), vr(t2)))
    p('v_lshlrev_b32 %s, 4, %s' % (vr(t1), vr(t1)))
    p('v_lshl_add_u32 %s, %s, 10, %s' % (vr(vW4), vr(t0), vr(t1)))
    for a in range(1, 7):
        p('s_mov_b32 %s, %s' % (sr(sS4 + a - 1), hx(8192 * a - 1024 * (a & 3))))

    def dma_w4(stage, slot):
        p('s_add_u32 %s, %s, %d' % (sr(sA), sr(sM), stage + 1))
        p('s_and_b32 %s, %s, 7' % (sr(sA), sr(sA)))
        p('s_lshl_b32 %s, %s, 7' % (sr(sA), sr(sA)))
        p('v_add_u32 %s, %s, %s' % (vr(vW4t), sr(sA), vr(vW4)))
        for a in range(7):
            if a % 4 == 0:
                setm0(sW7K, SLOT[slot] + 1024 * a)
            dma(vW4t, S_W4, '0' if a == 0 else sr(sS4 + a - 1), 1024 * (a & 3), 'v%d' % stage)

    USLOT = [0, 1, 2, 0, 1, 2, 3, 4]
    VSLOT = [0, 1, 2, 3, 4, 0, 1, 2]
    ABUF = [128, 156]

    def x6(s, tk):
        return ar((s * 2 + tk) * 4, 4)

    def w3_read(st, u):
        for hh in range(2):
            p('ds_read_b64_tr_b16 %s, %s offset:%d' % (ar(ABUF[st & 1] + 4 * u + 2 * hh, 2), vr(vAt + (u & 1)), 14336 * (st & 1) + 7168 * hh + 32 * u))

    def p6_mfma(st, u):
        A = ar(ABUF[st & 1] + 4 * u, 4)
        for tk in range(2):
            d = vr(vA6 + 8 * u + 4 * tk, 4)
            mf16(d, A, x6(st, tk), '0' if st == 0 else d)
        d = vr(vC6 + 4 * u, 4)
        mf16(d, A, ONES, '0' if st == 0 else d)

    for un in range(8):
        p.waitvm('u%d' % un, *(['x%d' % un] if un < 3 else []))
        bar()
        if un == 1:
            dma_w3(3, 0)
        if un == 2:
            dma_w3(4, 1)
        if un == 3:
            dma_w3(5, 2)
            dma_w3(6, 3)
            dma_w3(7, 4)
        if un >= 4:
            dma_w4(un - 4, VSLOT[un - 4])
        for i in range(2):
            p('v_add_u32 %s, %s, %s' % (vr(vAt + i), hx(SLOT[USLOT[un]]), vr(vAa + i)))
        if un < 3:
            xs = [s for s in range(16) if XG[s] == un]
            for s in xs[:2]:
                for tk in range(2):
                    p('ds_read_b128 %s, %s offset:%d' % (x6(s, tk), vr(vX6), 16384 * tk + 1024 * s))
        for u in range(7):
            w3_read(2 * un, u)
        if un < 3:
            for s in xs[2:]:
                for tk in range(2):
                    p('ds_read_b128 %s, %s offset:%d' % (x6(s, tk), vr(vX6), 16384 * tk + 1024 * s))
        for u in range(7):
            if un > 0:
                p6_mfma(2 * un - 1, u)
            w3_read(2 * un + 1, u)
        for u in range(7):
            p6_mfma(2 * un, u)
    for u in range(7):
        p6_mfma(15, u)
    stamp()
    p('s_barrier')
    UB = SLOT[4]
    H0, H1 = 57344, 151552
    p('s_and_b32 %s, %s, 1' % (sr(sA), sr(sW)))
    p('s_mul_i32 %s, %s, 14336' % (sr(sA), sr(sA)))
    p('s_lshr_b32 %s, %s, 1' % (sr(sB), sr(sW)))
    p('s_lshl_b32 %s, %s, 10' % (sr(sB), sr(sB)))
    p('s_add_u32 %s, %s, %s' % (sr(sA), sr(sA), sr(sB)))
    p('s_add_u32 %s, %s, %d' % (sr(sA), sr(sA), UB))
    p('v_lshrrev_b32 %s, 5, v0' % vr(t0))
    p('v_lshlrev_b32 %s, 9, %s' % (vr(t0), vr(t0)))
    p('v_lshl_add_u32 %s, %s, 4, %s' % (vr(t0), vr(vJ), vr(t0)))
    p('v_bfe_u32 %s, v0, 4, 1' % vr(t1))
    p('v_lshl_add_u32 %s, %s, 3, %s' % (vr(t0), vr(t1), vr(t0)))
    p('v_add_u32 %s, %s, %s' % (vr(vX6), sr(sA), vr(t0)))
    p('s_lshl_b32 %s, %s, 8' % (sr(sA), sr(sW)))
    p('v_lshl_add_u32 %s, %s, 4, %s' % (vr(t0), vr(vJ), sr(sA)))
    p('v_lshl_add_u32 %s, %s, 10, %s' % (vr(t0), vr(vG), vr(t0)))
    p('v_add_u32 %s, %s, %s' % (vr(t1), hx(H1), vr(t0)))
    for jt in range(4):
        if jt < 2:
            p('ds_write_b128 %s, %s offset:%d' % (vr(t0), vr(vH + 4 * jt, 4), H0 + 4096 * jt))
        else:
            p('ds_write_b128 %s, %s offset:%d' % (vr(t1), vr(vH + 4 * jt, 4), 4096 * (jt - 2)))
    vU = V(4)
    n = 0
    for u in range(7):
        for tk in range(2):
            a = vA6 + 8 * u + 4 * tk
            sel = 'op_sel:[0,1,0] op_sel_hi:[1,1,1]' if tk == 0 else 'op_sel_hi:[1,0,1]'
            for h in (0, 2):
                p('v_pk_fma_f32 %s, %s, %s, %s %s neg_lo:[0,1,0] neg_hi:[0,1,0]' % (vr(a + h, 2), vr(vC6 + 4 * u + h, 2), vr(vMu2, 2), vr(a + h, 2), sel))
            gelu4(a, (vKK, vKK2)[tk], (vIr, vIr2)[tk], vTm)
            d = vU + 2 * (n & 1)
            p('v_cvt_pk_bf16_f32 %s, %s, %s' % (vr(d), vr(a), vr(a + 1)))
            p('v_cvt_pk_bf16_f32 %s, %s, %s' % (vr(d + 1), vr(a + 2), vr(a + 3)))
            p('ds_write_b64 %s, %s offset:%d' % (vr(vX6), vr(d, 2), 2048 * u + 256 * tk))
            n += 1
    V.rel(vA6, 56)
    V.rel(vC6, 28)
    V.rel(vU, 4)
    bar()
    stamp()
    p('s_lshr_b32 %s, %s, 1' % (sr(sA), sr(sW)))
    p('s_lshl_b32 %s, %s, 10' % (sr(sB), sr(sA)))
    p('s_add_u32 %s, %s, %d' % (sr(sB), sr(sB), UB))
    p('v_add_u32 %s, %s, %s' % (vr(t0), sr(sB), vr(vL16)))
    for ft in range(14):
        p('ds_read_b128 %s, %s offset:%d' % (ar(4 * ft, 4), vr(t0), 2048 * ft))
    p('s_lshl_b32 %s, %s, 9' % (sr(sA), sr(sA)))
    p('s_bitcmp1_b32 %s, 0' % sr(sW))
    p('s_cselect_b32 %s, %s, 0' % (sr(sB), hx(H1 - H0)))
    p('s_add_u32 %s, %s, %s' % (sr(sA), sr(sA), sr(sB)))
    p('s_add_u32 %s, %s, %s' % (sr(sA), sr(sA), hx(H0)))
    p('v_and_b32 %s, 31, v0' % vr(t1))
    p('v_lshl_add_u32 %s, %s, 4, %s' % (vr(t1), vr(t1), sr(sA)))
    p('v_lshrrev_b32 %s, 5, v0' % vr(t2))
    p('v_lshl_add_u32 %s, %s, 10, %s' % (vr(t1), vr(t2), vr(t1)))
    for a in range(4):
        p('ds_read_b128 %s, %s offset:%d' % (vr(vH + 4 * a, 4), vr(t1), 2048 * a))
    vA7 = vAa
    p('v_bfe_u32 %s, v0, 2, 2' % vr(t0))
    p('v_lshl_add_u32 %s, %s, 3, %s' % (vr(t1), vr(t2), vr(t0)))
    p('v_lshlrev_b32 %s, 7, %s' % (vr(t1), vr(t1)))
    p('v_lshlrev_b32 %s, 5, %s' % (vr(t0), vr(t0)))
    p('v_and_b32 %s, 64, %s' % (vr(t0), vr(t0)))
    p('s_and_b32 %s, %s, 1' % (sr(sA), sr(sW)))
    p('s_lshl_b32 %s, %s, 6' % (sr(sA), sr(sA)))
    p('v_xor_b32 %s, %s, %s' % (vr(t0), sr(sA), vr(t0)))
    p('v_add_u32 %s, %s, %s' % (vr(t1), vr(t1), vr(t0)))
    p('v_and_b32 %s, 16, v0' % vr(t0))
    p('v_lshl_add_u32 %s, %s, 1, %s' % (vr(t1), vr(t0), vr(t1)))
    p('v_and_b32 %s, 3, v0' % vr(t0))
    p('v_lshl_add_u32 %s, %s, 3, %s' % (vr(vA7), vr(t0), vr(t1)))
    vAc7 = [V(16), V(16)]
    vPk = V(8)
    BUF7 = [64, 120]
    LAG7 = 2

    def p7_mfma(j, k):
        d = vr(vH if j == 7 else vAc7[j & 1], 16)
        mf32(d, ar(BUF7[j & 1] + 4 * k, 4), ar(4 * k, 4), '0' if (k == 0 and j < 7) else d)

    def p7_store(j):
        a = vAc7[j & 1]
        for i in range(8):
            p('v_cvt_pk_bf16_f32 %s, %s, %s' % (vr(vPk + i), vr(a + 2 * i), vr(a + 2 * i + 1)))
        p('s_add_u32 %s, %s, %d' % (sr(sA), sr(sM), j + 1))
        p('s_and_b32 %s, %s, 7' % (sr(sA), sr(sA)))
        p('s_lshl_b32 %s, %s, 16' % (sr(sA), sr(sA)))
        p('s_add_u32 %s, %s, %s' % (sr(sA), sr(sA), sr(sPS)))
        dual_store(['buffer_store_dwordx4 %s, %s, %s, %s offen offset:%d' % (vr(vPk + 4 * u, 4), vr(vL16), sr(S_WS, 4), sr(sA), 1024 * u) for u in range(2)], 'st')

    sPS = sKVO
    p('s_lshl_b32 %s, %s, 19' % (sr(sPS), sr(sT)))
    p('s_lshl_b32 %s, %s, 13' % (sr(sA), sr(sM)))
    p('s_add_u32 %s, %s, %s' % (sr(sPS), sr(sPS), sr(sA)))
    p('s_lshl_b32 %s, %s, 11' % (sr(sA), sr(sW)))
    p('s_add_u32 %s, %s, %s' % (sr(sPS), sr(sPS), sr(sA)))
    p('s_add_u32 %s, %s, %s' % (sr(sPS), sr(sPS), hx(PART)))
    for j in range(8):
        p.waitvm('v%d' % j)
        bar()
        if j < 4:
            dma_w4(j + 4, VSLOT[j + 4])
        p('v_add_u32 %s, %s, %s' % (vr(vAt), hx(SLOT[VSLOT[j]]), vr(vA7)))
        for k in range(14):
            for hh in range(2):
                p('ds_read_b64_tr_b16 %s, %s offset:%d' % (ar(BUF7[j & 1] + 4 * k + 2 * hh, 2), vr(vAt), 2048 * k + 512 * hh))
            if j > 0 and k == 5:
                for kk in range(14 - LAG7, 14):
                    p7_mfma(j - 1, kk)
        for k in range(14 - LAG7 if j < 7 else 2):
            p7_mfma(j, k)
            if j > 0 and k == 1:
                p7_store(j - 1)
    for k in range(2, 8):
        p7_mfma(7, k)
    flag_store(L_P)
    for k in range(8, 14):
        p7_mfma(7, k)
    stamp()
    vSel = V(8)
    p('v_and_b32 %s, 31, v0' % vr(t0))
    p('v_bfe_u32 %s, v0, 2, 1' % vr(t1))
    p('v_lshrrev_b32 %s, 5, v0' % vr(t2))
    p('v_cmp_eq_u32 vcc, %s, %s' % (vr(t1), vr(t2)))
    p('v_and_b32 %s, 1, v0' % vr(t1))
    p('v_lshlrev_b32 %s, 4, %s' % (vr(t1), vr(t1)))
    p('v_mov_b32 %s, 0x3f80' % vr(t2))
    p('v_lshlrev_b32 %s, %s, %s' % (vr(t1), vr(t1), vr(t2)))
    p('v_cndmask_b32 %s, %s, %s, vcc' % (vr(t1), vr(vZero), vr(t1)))
    p('v_lshrrev_b32 %s, 3, %s' % (vr(t2), vr(t0)))
    p('v_bfe_u32 %s, v0, 1, 1' % vr(t3))
    p('v_lshl_add_u32 %s, %s, 1, %s' % (vr(t2), vr(t2), vr(t3)))
    for i in range(8):
        p('v_cmp_eq_u32 vcc, %d, %s' % (i, vr(t2)))
        p('v_cndmask_b32 %s, %s, %s, vcc' % (vr(vSel + i), vr(vZero), vr(t1)))
    p('s_lshl_b32 %s, %s, 15' % (sr(sA), sr(sT)))
    p('s_lshl_b32 %s, %s, 10' % (sr(sB), sr(sW)))
    p('s_add_u32 %s, %s, %s' % (sr(sA), sr(sA), sr(sB)))
    p('s_add_u32 %s, %s, %s' % (sr(sA), sr(sA), hx(FLG + L_P)))
    p('v_lshlrev_b32 %s, 12, v0' % vr(t0))
    p('v_mov_b32 %s, %s' % (vr(t1), hx(OOB)))
    p('v_cmp_gt_u32 vcc, 8, v0')
    p('v_cndmask_b32 %s, %s, %s, vcc' % (vr(vPoll), vr(t1), vr(t0)))
    p('s_mul_i32 %s, %s, %d' % (sr(sC), sr(sM), 65536 - 8192))
    p('s_add_u32 %s, %s, %s' % (sr(sC), sr(sC), sr(sPS)))
    poll(['buffer_load_dword %s, %s, %s, %s offen sc1' % (vr(t0), vr(vPoll), sr(S_WS, 4), sr(sA))], [t0])
    vPa = V(56)
    for i in range(7):
        p('s_add_u32 %s, %s, %d' % (sr(sA), sr(sM), 7 - i))
        p('s_and_b32 %s, %s, 7' % (sr(sA), sr(sA)))
        p('s_lshl_b32 %s, %s, 13' % (sr(sA), sr(sA)))
        p('s_add_u32 %s, %s, %s' % (sr(sA), sr(sA), sr(sC)))
        for u in range(2):
            p('buffer_load_dwordx4 %s, %s, %s, %s offen offset:%d sc1' % (vr(vPa + 8 * i + 4 * u, 4), vr(vL16), sr(S_WS, 4), sr(sA), 1024 * u))
    p('s_lshl_b32 %s, %s, 6' % (sr(sA), sr(sT)))
    p('s_lshr_b32 %s, %s, 1' % (sr(sB), sr(sW)))
    p('s_lshl_b32 %s, %s, 5' % (sr(sB), sr(sB)))
    p('s_add_u32 %s, %s, %s' % (sr(sA), sr(sA), sr(sB)))
    p('v_and_b32 %s, 31, v0' % vr(t0))
    p('v_add_u32 %s, %s, %s' % (vr(t0), sr(sA), vr(t0)))
    p('v_lshlrev_b32 %s, 10, %s' % (vr(t0), vr(t0)))
    p('v_lshrrev_b32 %s, 5, v0' % vr(t1))
    p('v_lshl_add_u32 %s, %s, 4, %s' % (vr(t0), vr(t1), vr(t0)))
    p('s_lshl_b32 %s, %s, 7' % (sr(sA), sr(sM)))
    p('s_and_b32 %s, %s, 1' % (sr(sB), sr(sW)))
    p('s_lshl_b32 %s, %s, 6' % (sr(sB), sr(sB)))
    p('s_add_u32 %s, %s, %s' % (sr(sA), sr(sA), sr(sB)))
    for i in range(7):
        for u in range(2):
            mf32(vr(vH, 16), vr(vSel + 4 * u, 4), vr(vPa + 8 * i + 4 * u, 4), vr(vH, 16))
    for i in range(8):
        p('v_cvt_pk_bf16_f32 %s, %s, %s' % (vr(vPk + i), vr(vH + 2 * i), vr(vH + 2 * i + 1)))
    for u in range(2):
        p('v_permlane32_swap_b32 %s, %s' % (vr(vPk + 4 * u), vr(vPk + 4 * u + 2)))
        p('v_permlane32_swap_b32 %s, %s' % (vr(vPk + 4 * u + 1), vr(vPk + 4 * u + 3)))
        p('buffer_store_dwordx4 %s, %s, %s, %s offen offset:%d' % (vr(vPk + 4 * u, 4), vr(t0), sr(S_OUT, 4), sr(sA), 32 * u))
p('s_branch KFIN')

p.label('SAFE_SOFTMAX')
R = fb_regs


def fb_scores(qb):
    p('s_lshl_b32 %s, %s, 1' % (sr(sA), sr(sT)))
    p('s_add_u32 %s, %s, %d' % (sr(sA), sr(sA), qb))
    p('s_sub_u32 %s, %s, %s' % (sr(sA), sr(sA), sr(sE)))
    p('s_lshr_b32 %s, %s, 1' % (sr(sB), sr(sA)))
    p('s_sub_u32 %s, %s, %s' % (sr(sB), sr(sT), sr(sB)))
    p('s_mul_i32 %s, %s, %d' % (sr(sB), sr(sB), 32 * KVS))
    p('s_sub_u32 %s, %s, %s' % (sr(sB), sr(sKVO), sr(sB)))
    p('s_and_b32 %s, %s, 1' % (sr(sA), sr(sA)))
    p('s_lshl_b32 %s, %s, 10' % (sr(sC), sr(sA)))
    p('s_add_u32 %s, %s, %s' % (sr(sC), sr(sC), sr(sB)))
    p('s_mul_i32 %s, %s, 1280' % (sr(sA), sr(sA)))
    p('s_add_u32 %s, %s, %s' % (sr(sB), sr(sB), sr(sA)))
    p('buffer_load_dwordx4 %s, %s, %s, %s offen sc1' % (vr(R['K'], 4), vr(vL16), sr(S_WS, 4), sr(sC)))
    for u in range(2):
        p('buffer_load_dwordx4 %s, %s, %s, %s offen offset:%d sc1' % (vr(R['Vv'] + 4 * u, 4), vr(R['Vo']), sr(S_WS, 4), sr(sB), 2048 + 640 * u))
    mf32(vr(R['S'], 16), vr(R['K'], 4), vr(R['Q'] + 4 * qb, 4), '0')
    p('s_lshl_b32 %s, %s, 5' % (sr(sA), sr(sE)))
    p('v_add_u32 %s, %s, %s' % (vr(R['D']), sr(sA), vr(R['Qm'])))
    p('v_mov_b32 %s, 0xff800000' % vr(R['T'] + 1))
    for r in range(16):
        p('v_subrev_u32 %s, %d, %s' % (vr(R['T']), 8 * (r >> 2) + (r & 3), vr(R['D'])))
        p('v_cmp_gt_u32 vcc, 0x100, %s' % vr(R['T']))
        p('v_cndmask_b32 %s, %s, %s, vcc' % (vr(R['S'] + r), vr(R['T'] + 1), vr(R['S'] + r)))


for qb in range(2):
    p('s_lshl_b32 %s, %s, 1' % (sr(sG), sr(sT)))
    p('s_add_u32 %s, %s, %d' % (sr(sG), sr(sG), qb))
    p('s_min_u32 %s, %s, 8' % (sr(sG), sr(sG)))
    p('v_mov_b32 %s, 0xff800000' % vr(R['M']))
    p('s_mov_b32 %s, 0' % sr(sE))
    l1 = p.newlabel('fbmax')
    p.label(l1)
    fb_scores(qb)
    for r in range(16):
        p('v_max_f32 %s, %s, %s' % (vr(R['M']), vr(R['M']), vr(R['S'] + r)))
    p('s_add_u32 %s, %s, 1' % (sr(sE), sr(sE)))
    p('s_cmp_le_u32 %s, %s' % (sr(sE), sr(sG)))
    p('s_cbranch_scc1 %s' % l1)
    p('v_mov_b32 %s, %s' % (vr(R['T']), vr(R['M'])))
    p('v_permlane32_swap_b32 %s, %s' % (vr(R['T']), vr(R['M'])))
    p('v_max_f32 %s, %s, %s' % (vr(R['M']), vr(R['M']), vr(R['T'])))
    for r in range(16):
        p('v_mov_b32 %s, 0' % vr(R['O'][qb] + r))
    p('s_mov_b32 %s, 0' % sr(sE))
    l2 = p.newlabel('fbsum')
    p.label(l2)
    fb_scores(qb)
    for r in range(16):
        p('v_sub_f32 %s, %s, %s' % (vr(R['S'] + r), vr(R['S'] + r), vr(R['M'])))
        p('v_exp_f32 %s, %s' % (vr(R['S'] + r), vr(R['S'] + r)))
    for i in range(8):
        p('v_cvt_pk_bf16_f32 %s, %s, %s' % (vr(R['P'] + i), vr(R['S'] + 2 * i), vr(R['S'] + 2 * i + 1)))
    for u in range(2):
        mf32(vr(R['O'][qb], 16), vr(R['Vv'] + 4 * u, 4), vr(R['P'] + 4 * u, 4), vr(R['O'][qb], 16))
    p('s_add_u32 %s, %s, 1' % (sr(sE), sr(sE)))
    p('s_cmp_le_u32 %s, %s' % (sr(sE), sr(sG)))
    p('s_cbranch_scc1 %s' % l2)
p('s_branch SOFTMAX_DONE')
p.label('KFIN')
finish_kernel()

body = p.finish()
ref = open(os.path.join(os.path.dirname(os.path.abspath(__file__)), '..', 'cdna_kernels', NAME + '.s.ref')).read()
head = ''.join(l + '\n' for l in ref.split('\n') if l.startswith(';') and '@launch' not in l)
out = head + '; @launch grid=(256,1,1) block=(256,1,1) lds=163840\n'
out += '.amdgcn_target "amdgcn-amd-amdhsa--gfx950"\n.text\n.globl %s_kernel\n.p2align 8\n.type %s_kernel,@function\n%s_kernel:\n' % (NAME, NAME, NAME)
out += body
out += '''.section .rodata,"a"
.p2align 6
.amdhsa_kernel %s_kernel
  .amdhsa_next_free_vgpr 512
  .amdhsa_next_free_sgpr 102
  .amdhsa_accum_offset 256
  .amdhsa_group_segment_fixed_size 0
  .amdhsa_kernarg_size 88
  .amdhsa_user_sgpr_count 2
  .amdhsa_user_sgpr_kernarg_segment_ptr 1
  .amdhsa_system_sgpr_workgroup_id_x 1
.end_amdhsa_kernel
''' % NAME
dst = OPT.get('out') or os.path.join(os.path.dirname(os.path.abspath(__file__)), '..', 'cdna_kernels', NAME + '.s')
open(dst, 'w').write(out)
print('wrote', dst, 'instructions', sum(1 for x in p.ins if x.kind == 'ins'), 'nops', p.total_nops)
```

```python
import sys, math, struct, os
sys.path.insert(0, os.path.dirname(os.path.abspath(__file__)))
from asmlib import Prog, vr, ar, sr

NAME = 'sequential_preLN__sliding_block__mixer_s_mlp__prompt'
OPT = dict(stop=99, stamps=False, force_slow=False, force_fb=False)
for a in sys.argv[1:]:
    if '=' in a:
        k, v = a.split('=')
        OPT[k] = int(v) if v.lstrip('-').isdigit() else v

KV, KVS = 0x0000000, 5120
FLG = 0x0500000
OB, HB, GB, XB, GH = 0x0600000, 0x0800000, 0x0A00000, 0x0C00000, 0x0E00000
PART = 0x1000000
STAMP = 0x2000000
WS_BYTES = 268435456
OOB = 0x40000000
L_KV, L_O, L_H, L_G, L_HALO, L_X, L_P = [128 * i for i in range(7)]
SPIN = 1 << 18


def f2u(x):
    return struct.unpack('<I', struct.pack('<f', x))[0]


def hx(x):
    return '0x%x' % (x & 0xffffffff)


S_X, S_WQ, S_WO, S_W1, S_W2, S_W3, S_W4, S_OUT, S_DBG, S_WS = [4 + 4 * i for i in range(10)]
sT, sM, sW, sFAST, sXCC, sW4K = 44, 45, 46, 47, 48, 49
sC3 = 50
sC1 = 53
sFLG = 56
sSPIN = 57
sKVR = 58
sKVO = 62
sTILE = 63
sM1, sM2, sM3 = 64, 66, 68
sA, sB, sC, sD, sE, sF, sG = 70, 71, 72, 73, 74, 75, 76
sXS = 77
sSTAMP = 78


class Alloc:
    def __init__(self, n):
        self.free = [True] * n

    def __call__(self, n=1, al=None):
        al = al or (4 if n >= 4 else (2 if n == 2 else 1))
        for b in range(0, len(self.free) - n + 1, al):
            if all(self.free[b:b + n]):
                for i in range(b, b + n):
                    self.free[i] = False
                return b
        raise RuntimeError('out of registers for %d' % n)

    def rel(self, b, n=1):
        for i in range(b, b + n):
            assert not self.free[i], ('double free', i)
            self.free[i] = True

    def used(self):
        return sum(1 for f in self.free if not f)


p = Prog()
V = Alloc(256)
nstamp = [0]


def stamp():
    if OPT['stamps']:
        if nstamp[0]:
            p('s_mov_b32 %s, s100' % sr(sSTAMP + nstamp[0] - 1))
        p('s_memtime s[100:101]')
        nstamp[0] += 1
        assert nstamp[0] <= 22


def mf16(d, a, b, c):
    p('v_mfma_f32_16x16x32_bf16 %s, %s, %s, %s' % (d, a, b, c))


def mf32(d, a, b, c):
    p('v_mfma_f32_32x32x16_bf16 %s, %s, %s, %s' % (d, a, b, c))


def bar():
    p('s_waitcnt lgkmcnt(0)')
    p('s_barrier')


def dma(voff, srd, soff, imm, tag, sc1=False):
    p('buffer_load_dwordx4 %s, %s, %s offen offset:%d%s lds' % (vr(voff), sr(srd, 4), soff, imm, ' sc1' if sc1 else ''), tag=tag)


def setm0(base_sreg, const):
    if base_sreg is None:
        p('s_mov_b32 m0, %s' % hx(const))
    else:
        p('s_add_u32 m0, %s, %s' % (sr(base_sreg), hx(const)))


def dual_store(stores, tag):
    ls, le = p.newlabel('slow'), p.newlabel('join')
    p('s_cmp_eq_u32 %s, 0' % sr(sFAST))
    p('s_cbranch_scc1 %s' % ls)
    for s in stores:
        p(s, tag=tag)
    p('s_branch %s' % le)
    p.label(ls)
    for s in stores:
        p(s + ' sc1', tag=tag)
    p.label(le)


def poll(loads, checks):
    lp, ld = p.newlabel('poll'), p.newlabel('polled')
    p('s_mov_b32 %s, %s' % (sr(sSPIN), hx(SPIN)))
    p.label(lp)
    for l in loads:
        p(l)
    if len(checks) == 1:
        p('v_cmp_eq_u32 vcc, -1, %s' % vr(checks[0]))
    else:
        p('v_cmp_eq_u32 vcc, -1, %s' % vr(checks[0]))
        for c in checks[1:]:
            p('v_cmp_eq_u32 %s, -1, %s' % (sr(sF - 1, 2), vr(c)))
            p('s_or_b64 vcc, vcc, %s' % sr(sF - 1, 2))
    p('s_cbranch_vccz %s' % ld)
    p('s_sub_u32 %s, %s, 1' % (sr(sSPIN), sr(sSPIN)))
    p('s_cbranch_scc0 %s' % lp)
    p.label(ld)


def finish_kernel():
    if OPT.get('fixrt'):
        if OPT.get('wb'):
            p('s_waitcnt vmcnt(0)')
            p('buffer_wbl2 sc1')
            p('s_waitcnt vmcnt(0)')
        p('s_mov_b32 %s, %d' % (sr(sSPIN), 1 << 20))
        p.label('FIXL')
        p('s_memrealtime s[96:97]')
        p('s_sub_u32 s96, s96, s98')
        p('s_cmp_ge_u32 s96, %d' % OPT['fixrt'])
        p('s_cbranch_scc1 FIXD')
        p('s_sub_u32 %s, %s, 1' % (sr(sSPIN), sr(sSPIN)))
        p('s_cbranch_scc0 FIXL')
        p.label('FIXD')
    if OPT.get('pad'):
        stamp()
        p('s_mov_b32 %s, %d' % (sr(sSPIN), OPT['pad']))
        p.label('PADL')
        for i in range(16):
            p('v_exp_f32 v%d, v%d' % (100 + i, 100 + i))
        p('s_sub_u32 %s, %s, 1' % (sr(sSPIN), sr(sSPIN)))
        p('s_cbranch_scc0 PADL')
    if OPT['stamps']:
        stamp()
        t = V(1)
        a = V(1)
        p('s_mov_b32 %s, s100' % sr(sSTAMP + nstamp[0] - 1))
        p('s_lshl_b32 %s, s2, 9' % sr(sA))
        p('s_lshl_b32 %s, %s, 7' % (sr(sB), sr(sW)))
        p('s_add_u32 %s, %s, %s' % (sr(sA), sr(sA), sr(sB)))
        p('s_add_u32 %s, %s, %s' % (sr(sA), sr(sA), hx(STAMP)))
        for i in range(nstamp[0]):
            p('v_mov_b32 %s, %s' % (vr(t), sr(sSTAMP + i)))
            p('buffer_store_dword %s, %s, %s, %s offen offset:%d' % (vr(t), vr(vL0), sr(S_WS, 4), sr(sA), 4 * i))
        p('v_mov_b32 %s, %s' % (vr(t), sr(sFAST)))
        p('buffer_store_dword %s, %s, %s, %s offen offset:%d' % (vr(t), vr(vL0), sr(S_WS, 4), sr(sA), 124))
    p('s_waitcnt vmcnt(0)')
    p.label('KEND')
    p('s_endpgm')


p('s_cmp_ge_u32 s2, 256')
p('s_cbranch_scc1 KEND')
if OPT.get('fixrt'):
    p('s_memrealtime s[98:99]')
for srd, off in ((S_X, 0), (S_WQ, 8), (S_WS, 80), (S_WO, 16), (S_W1, 32), (S_W2, 40), (S_W3, 48), (S_W4, 56), (S_OUT, 64), (S_DBG, 72)):
    p('s_load_dwordx2 %s, s[0:1], %d' % (sr(srd, 2), off))
stamp()
vLane, vL16, vL0, vZero = V(1), V(1), V(1), V(1)
assert vLane == 0
vG, vJ = V(1), V(1)
t0, t1, t2, t3 = V(1), V(1), V(1), V(1)
p('v_lshrrev_b32 %s, 6, v0' % vr(t0))
p('v_and_b32 v0, 63, v0')
p('v_readfirstlane_b32 %s, %s' % (sr(sW), vr(t0)))
for srd, n in ((S_X, 2048 * 1024), (S_WQ, 512 * 3072), (S_WO, 512 * 1024), (S_W1, 512 * 1024), (S_W2, 512 * 1024),
               (S_W3, 512 * 3584), (S_W4, 1792 * 1024), (S_OUT, 2048 * 1024), (S_DBG, 256), (S_WS, WS_BYTES)):
    p('s_mov_b32 %s, %s' % (sr(srd + 2), hx(n)))
    p('s_mov_b32 %s, 0x20000' % sr(srd + 3))
p('s_and_b32 %s, s2, 7' % sr(sXS))
p('s_lshr_b32 %s, s2, 6' % sr(sA))
p('s_lshl_b32 %s, %s, 2' % (sr(sT), sr(sXS)))
p('s_add_u32 %s, %s, %s' % (sr(sT), sr(sT), sr(sA)))
p('s_bfe_u32 %s, s2, 0x30003' % sr(sM))
p('s_lshl_b32 %s, %s, 12' % (sr(sW4K), sr(sW)))
p('s_getreg_b32 %s, hwreg(HW_REG_XCC_ID,0,4)' % sr(sXCC))
for s in (1, 2, 3):
    p('s_mov_b32 %s, %s' % (sr(sC3 + s - 1), hx(s * (32 * 3072 - 1024))))
    p('s_mov_b32 %s, %s' % (sr(sC1 + s - 1), hx(s * (32 * 1024 - 1024))))
p('s_lshl_b32 %s, %s, 3' % (sr(sA), sr(sT)))
p('s_add_u32 %s, %s, %s' % (sr(sA), sr(sA), sr(sM)))
p('s_lshl_b32 %s, %s, 2' % (sr(sA), sr(sA)))
p('s_add_u32 %s, %s, %s' % (sr(sA), sr(sA), sr(sW)))
p('s_lshl_b32 %s, %s, 10' % (sr(sFLG), sr(sA)))
p('s_add_u32 %s, %s, %s' % (sr(sFLG), sr(sFLG), hx(FLG)))
p('s_mul_i32 %s, %s, %d' % (sr(sKVO), sr(sA), KVS))
p('s_lshl_b32 %s, %s, 2' % (sr(sTILE), sr(sT)))
p('s_add_u32 %s, %s, %s' % (sr(sTILE), sr(sTILE), sr(sW)))
p('s_lshl_b32 %s, %s, 14' % (sr(sTILE), sr(sTILE)))
p('v_lshlrev_b32 %s, 4, v0' % vr(vL16))
p('v_lshrrev_b32 %s, 4, v0' % vr(vG))
p('v_and_b32 %s, 15, v0' % vr(vJ))

vXo, vWo, vWt = V(1), V(1), V(1)
p('s_lshr_b32 %s, %s, 10' % (sr(sA), sr(sTILE)))
p('v_add_u32 %s, %s, %s' % (vr(t0), sr(sA), vr(vJ)))
p('v_lshlrev_b32 %s, 10, %s' % (vr(t0), vr(t0)))
p('v_lshl_add_u32 %s, %s, 4, %s' % (vr(vXo), vr(vG), vr(t0)))
vSw, vJr = V(1), V(1)
p('v_lshrrev_b32 %s, 3, v0' % vr(vJr))
p('v_and_b32 %s, 6, %s' % (vr(t0), vr(vJr)))
p('v_and_b32 %s, 7, v0' % vr(t1))
p('v_xor_b32 %s, %s, %s' % (vr(t0), vr(t0), vr(t1)))
p('v_lshlrev_b32 %s, 4, %s' % (vr(vSw), vr(t0)))
p('s_lshl_b32 %s, %s, 7' % (sr(sB), sr(sM)))
p('v_add_u32 %s, %s, %s' % (vr(vSw), sr(sB), vr(vSw)))
p('s_and_b32 %s, %s, 1' % (sr(sA), sr(sW)))
p('s_lshl_b32 %s, %s, 4' % (sr(sA), sr(sA)))
p('s_lshr_b32 %s, %s, 1' % (sr(sC), sr(sW)))
p('s_lshl_b32 %s, %s, 2' % (sr(sD), sr(sC)))
p('s_add_u32 %s, %s, %s' % (sr(sD), sr(sD), sr(sA)))
p('v_lshrrev_b32 %s, 5, v0' % vr(t0))
p('v_and_b32 %s, 3, %s' % (vr(t1), vr(vJr)))
p('v_lshl_add_u32 %s, %s, 3, %s' % (vr(t0), vr(t0), vr(t1)))
p('v_add_u32 %s, %s, %s' % (vr(t0), sr(sD), vr(t0)))
p('v_mul_u32_u24 %s, 0xc00, %s' % (vr(t0), vr(t0)))
p('v_add_u32 %s, %s, %s' % (vr(vWo), vr(t0), vr(vSw)))
vClr = V(4)
for i in range(4):
    p('v_mov_b32 %s, -1' % vr(vClr + i))
p('buffer_store_dwordx4 %s, %s, %s, %s offen sc1' % (vr(vClr, 4), vr(vL16), sr(S_WS, 4), sr(sFLG)), tag='clr')

CH = 16384
PASS_COL = [1024, 2048, 0]
WCH = [[4, 5, 6, 7], [8, 9, 0, 4], [1, 5, 2, 6]]


def dma_x(G):
    for s in range(4):
        imm = 256 * G + 64 * s
        setm0(sW4K, G * CH + 1024 * s - imm)
        dma(vXo, S_X, '0', imm, 'g%d' % G)


def dma_wq(ps, G):
    setm0(sW4K, WCH[ps][G] * CH)
    p('v_add_u32 %s, %s, %s' % (vr(vWt), hx(128 * G * 3072 + PASS_COL[ps]), vr(vWo)))
    for s in range(4):
        dma(vWt, S_WQ, '0' if s == 0 else sr(sC3 + s - 1), 1024 * s, 'g%d' % (4 * ps + G))


for G in range(4):
    dma_x(G)
    dma_wq(0, G)
dma_wq(1, 0)
dma_wq(1, 1)
V.rel(vClr, 4)

p('v_mov_b32 %s, 0' % vr(vZero))
p('v_mov_b32 %s, %s' % (vr(vL0), hx(OOB)))
p('v_cmp_eq_u32 vcc, 0, v0')
p('v_cndmask_b32 %s, %s, %s, vcc' % (vr(vL0), vr(vL0), vr(vZero)))
vOnes = V(4)
for i in range(4):
    p('v_mov_b32 %s, 0x3f803f80' % vr(vOnes + i))
ONES = vr(vOnes, 4)
p('s_mov_b32 %s, 0x22222222' % sr(sM1))
p('s_mov_b32 %s, 0x22222222' % sr(sM1 + 1))
p('s_mov_b32 %s, 0x44444444' % sr(sM2))
p('s_mov_b32 %s, 0x44444444' % sr(sM2 + 1))
p('s_mov_b32 %s, 0x88888888' % sr(sM3))
p('s_mov_b32 %s, 0x88888888' % sr(sM3 + 1))
vTr0 = V(1)
p('v_bfe_u32 %s, v0, 2, 3' % vr(t0))
p('v_lshrrev_b32 %s, 1, %s' % (vr(t1), vr(t0)))
p('v_lshlrev_b32 %s, 5, %s' % (vr(t1), vr(t1)))
p('v_lshl_add_u32 %s, %s, 7, %s' % (vr(t1), vr(t0), vr(t1)))
p('v_and_b32 %s, 3, v0' % vr(t0))
p('v_lshl_add_u32 %s, %s, 3, %s' % (vr(t1), vr(t0), vr(t1)))
p('v_lshrrev_b32 %s, 5, v0' % vr(t0))
p('v_lshl_add_u32 %s, %s, 12, %s' % (vr(vTr0), vr(t0), vr(t1)))
vTrP = V(3, 1)
p('s_lshl_b32 %s, %s, 5' % (sr(sA), sr(sW)))
p('v_xor_b32 %s, %s, %s' % (vr(vTrP), sr(sA), vr(vTr0)))
p('v_add_u32 %s, 0x10000, %s' % (vr(vTrP + 1), vr(vTrP)))
p('v_add_u32 %s, 0x20000, %s' % (vr(vTrP + 2), vr(vTrP)))
vXs = V(1)
p('v_add_u32 %s, %s, %s' % (vr(vXs), sr(sW4K), vr(vL16)))
vStat = V(1)
p('v_lshrrev_b32 %s, 2, %s' % (vr(t0), vr(vJ)))
p('v_cmp_eq_u32 vcc, %s, %s' % (vr(t0), vr(vG)))
p('v_lshlrev_b32 %s, 3, %s' % (vr(t1), vr(vJ)))
p('v_mov_b32 %s, %s' % (vr(vStat), hx(OOB)))
p('v_cndmask_b32 %s, %s, %s, vcc' % (vr(vStat), vr(vStat), vr(t1)))
vVo, vVc = V(1), V(1)
p('v_lshrrev_b32 %s, 5, v0' % vr(t0))
p('v_lshl_add_u32 %s, %s, 4, %s' % (vr(t0), vr(t0), vr(vJ)))
p('v_lshlrev_b32 %s, 4, %s' % (vr(t0), vr(t0)))
p('v_and_b32 %s, 11, v0' % vr(t1))
p('v_cmp_eq_u32 vcc, 0, %s' % vr(t1))
p('v_mov_b32 %s, %s' % (vr(t2), hx(OOB)))
p('v_mov_b32 %s, 0x200' % vr(t3))
p('v_cndmask_b32 %s, %s, %s, vcc' % (vr(t2), vr(t2), vr(t3)))
p('v_cndmask_b32 %s, %s, %s, vcc' % (vr(vVc), vr(vZero), vr(vOnes)))
p('v_and_b32 %s, 16, v0' % vr(t1))
p('v_cmp_eq_u32 vcc, 0, %s' % vr(t1))
p('v_cndmask_b32 %s, %s, %s, vcc' % (vr(vVo), vr(t2), vr(t0)))
vCd, vCf = V(16), V(16)
NEG = f2u(-1e30)
p('v_and_b32 %s, 31, v0' % vr(t0))
p('v_lshrrev_b32 %s, 5, v0' % vr(t1))
p('v_lshlrev_b32 %s, 2, %s' % (vr(t1), vr(t1)))
vQm = V(1)
p('v_sub_u32 %s, %s, %s' % (vr(vQm), vr(t0), vr(t1)))
p('v_mov_b32 %s, %s' % (vr(t2), hx(NEG)))
for r in range(16):
    p('v_cmp_le_i32 vcc, %d, %s' % (8 * (r >> 2) + (r & 3), vr(vQm)))
    p('v_cndmask_b32 %s, %s, %s, vcc' % (vr(vCd + r), vr(t2), vr(vZero)))
    p('v_cndmask_b32 %s, %s, %s, vcc' % (vr(vCf + r), vr(vZero), vr(t2)))
vPoll = V(1)
for d in range(1, 5):
    p('s_sub_u32 %s, %s, %d' % (sr(sA), sr(sKVO), d * 32 * KVS))
    p('s_cmp_ge_u32 %s, %d' % (sr(sT), d))
    p('s_cselect_b32 %s, %s, %s' % (sr(sKVR + d - 1), sr(sA), sr(sKVO)))
p('v_add_u32 %s, 1, v0' % vr(t0))
p('v_cmp_ge_u32 vcc, %s, %s' % (sr(sT), vr(t0)))
p('v_cndmask_b32 %s, %s, %s, vcc' % (vr(t0), vr(vZero), vr(t0)))
p('v_lshlrev_b32 %s, 15, %s' % (vr(t0), vr(t0)))
p('v_sub_u32 %s, %s, %s' % (vr(t0), sr(sFLG), vr(t0)))
p('v_cmp_gt_u32 vcc, 4, v0')
p('v_mov_b32 %s, %s' % (vr(vPoll), hx(OOB)))
p('v_cndmask_b32 %s, %s, %s, vcc' % (vr(vPoll), vr(vPoll), vr(t0)))

LAG = 1
vWb = [V(16), V(16)]
vSb = [V(16), V(16)]
vAccA, vAccB = V(16), V(16)
vCsA, vCsB = V(4), V(4)
vSum, vGram = V(4), V(4)
vRM = V(8)
vK, vVf, vQ = V(8), V(16), V(8)
STAT_LDS = 3 * CH


def xa(s, u):
    return ar((s * 4 + u) * 4, 4)


def p1_reads(k):
    ps, G = k >> 2, k & 3
    base = WCH[ps][G] * CH
    for s in range(4):
        if ps == 0:
            for u in range(4):
                p('ds_read_b128 %s, %s offset:%d' % (xa(4 * G + s, u), vr(vL16), G * CH + 4096 * u + 1024 * s))
        for hh in range(2):
            a = base + 8192 * hh + 1024 * s
            p('ds_read_b64_tr_b16 %s, %s offset:%d' % (vr(vWb[k & 1] + 4 * s + 2 * hh, 2), vr(vTrP + (a >> 16)), a & 0xffff))
        if ps == 0:
            p('ds_read_b128 %s, %s offset:%d' % (vr(vSb[k & 1] + 4 * s, 4), vr(vXs), G * CH + 1024 * s))


def p1_mfma(k, s):
    ps, G = k >> 2, k & 3
    st = 4 * G + s
    W = vr(vWb[k & 1] + 4 * s, 4)
    acc, cs = (vAccB, vCsB) if ps == 1 else (vAccA, vCsA)
    for u in range(4):
        d = vr(acc + 4 * u, 4)
        c = '0' if st == 0 else d
        if ps == 1:
            mf16(d, xa(st, u), W, c)
        else:
            mf16(d, W, xa(st, u), c)
    d = vr(cs, 4)
    c = '0' if st == 0 else d
    if ps == 1:
        mf16(d, ONES, W, c)
    else:
        mf16(d, W, ONES, c)
    if ps == 0:
        X = vr(vSb[k & 1] + 4 * s, 4)
        mf16(vr(vSum, 4), ONES, X, '0' if st == 0 else vr(vSum, 4))
        mf16(vr(vGram, 4), X, X, '0' if st == 0 else vr(vGram, 4))


def diag_select(dst, g):
    p('v_cndmask_b32 %s, %s, %s, %s' % (vr(dst), vr(g), vr(g + 1), sr(sM1, 2)))
    p('v_cndmask_b32 %s, %s, %s, %s' % (vr(dst), vr(dst), vr(g + 2), sr(sM2, 2)))
    p('v_cndmask_b32 %s, %s, %s, %s' % (vr(dst), vr(dst), vr(g + 3), sr(sM3, 2)))


EPS = f2u(1e-5)
INV_D = f2u(1.0 / 512)


def mean_rstd(mu, rs, s, ss, var=None):
    var = var if var is not None else ss
    p('v_mul_f32 %s, %s, %s' % (vr(mu), hx(INV_D), vr(s)))
    p('v_mul_f32 %s, %s, %s' % (vr(var), hx(INV_D), vr(ss)))
    p('v_fma_f32 %s, -%s, %s, %s' % (vr(var), vr(mu), vr(mu), vr(var)))
    p('v_max_f32 %s, 0, %s' % (vr(var), vr(var)))
    p('v_add_f32 %s, %s, %s' % (vr(rs), hx(EPS), vr(var)))
    p('v_rsq_f32 %s, %s' % (vr(rs), vr(rs)))


def p1_stats():
    a = V(2)
    diag_select(t0, vGram)
    mean_rstd(t1, a, vSum, t0)
    p('v_mul_f32 %s, %s, %s' % (vr(a + 1), vr(t1), vr(a)))
    p('s_lshl_b32 %s, %s, 7' % (sr(sA), sr(sW)))
    p('s_add_u32 %s, %s, %d' % (sr(sA), sr(sA), STAT_LDS))
    p('v_lshl_add_u32 %s, %s, 3, %s' % (vr(t0), vr(vJ), sr(sA)))
    p('s_mov_b32 exec_lo, 0x00f0000f')
    p('s_mov_b32 exec_hi, 0xf0000f00')
    p('ds_write_b64 %s, %s' % (vr(t0), vr(a, 2)))
    p('s_mov_b64 exec, -1')
    V.rel(a, 2)


def col_epilogue(acc, cs, dst):
    for u in range(4):
        R, M = vRM + 2 * u, vRM + 2 * u + 1
        for r in range(4):
            p('v_mul_f32 %s, %s, %s' % (vr(t0 + r), vr(M), vr(cs + r)))
        for r in range(4):
            p('v_fma_f32 %s, %s, %s, -%s' % (vr(t0 + r), vr(acc + 4 * u + r), vr(R), vr(t0 + r)))
        d = dst + 4 * (u >> 1) + 2 * (u & 1)
        p('v_cvt_pk_bf16_f32 %s, %s, %s' % (vr(d), vr(t0), vr(t1)))
        p('v_cvt_pk_bf16_f32 %s, %s, %s' % (vr(d + 1), vr(t2), vr(t3)))
    for b in range(2):
        p('v_permlane16_swap_b32 %s, %s' % (vr(dst + 4 * b), vr(dst + 4 * b + 2)))
        p('v_permlane16_swap_b32 %s, %s' % (vr(dst + 4 * b + 1), vr(dst + 4 * b + 3)))


assert t1 == t0 + 1 and t2 == t0 + 2 and t3 == t0 + 3
vRow = vSb[0]
assert vSb[1] == vSb[0] + 16
vHello = V(1)

for k in range(12):
    p.waitvm('g%d' % k)
    bar()
    if k == 0:
        stamp()
        lh = p.newlabel('nohello')
        p('s_cmp_lg_u32 %s, 0' % sr(sW))
        p('s_cbranch_scc1 %s' % lh)
        p('s_or_b32 %s, %s, 0x80' % (sr(sA), sr(sXCC)))
        p('v_mov_b32 %s, %s' % (vr(t0), sr(sA)))
        p('buffer_store_byte %s, %s, %s, s2 offen sc1' % (vr(t0), vr(vL0), sr(S_DBG, 4)))
        p.label(lh)
    if k == 1:
        dma_wq(1, 2)
        dma_wq(1, 3)
    if k == 2:
        dma_wq(2, 0)
        dma_wq(2, 1)
    if k == 3:
        dma_wq(2, 2)
        dma_wq(2, 3)
    if k == 5:
        p('v_lshlrev_b32 %s, 3, %s' % (vr(t0), vr(vJ)))
        for u in range(4):
            p('ds_read_b64 %s, %s offset:%d' % (vr(vRM + 2 * u, 2), vr(t0), STAT_LDS + 128 * u))
    if k == 7:
        p('v_lshlrev_b32 %s, 5, %s' % (vr(t0), vr(vG)))
        for u in range(4):
            for h in range(2):
                p('ds_read_b128 %s, %s offset:%d' % (vr(vRow + 8 * u + 4 * h, 4), vr(t0), STAT_LDS + 128 * u + 16 * h))
    p1_reads(k)
    if k > 0:
        for s in range(4 - LAG, 4):
            p1_mfma(k - 1, s)
    if k == 4:
        stamp()
        p1_stats()
    for s in range(4 - LAG):
        p1_mfma(k, s)
    if k == 5:
        col_epilogue(vAccA, vCsA, vK)
        for b in range(2):
            p('buffer_store_dwordx4 %s, %s, %s, %s offen offset:%d sc1' % (vr(vK + 4 * b, 4), vr(vL16), sr(S_WS, 4), sr(sKVO), 1024 * b), tag='kv')
    if k == 8:
        for u in range(4):
            for r in range(4):
                R = vRow + 8 * u + 2 * r
                p('v_mul_f32 %s, %s, %s' % (vr(t0 + r), vr(R + 1), vr(vCsB)))
            for r in range(4):
                R = vRow + 8 * u + 2 * r
                p('v_fma_f32 %s, %s, %s, -%s' % (vr(t0 + r), vr(vAccB + 4 * u + r), vr(R), vr(t0 + r)))
            d = vVf + 4 * u
            p('v_mov_b32 %s, %s' % (vr(d + 2), vr(vVc)))
            p('v_mov_b32 %s, %s' % (vr(d + 3), vr(vVc)))
            p('v_cvt_pk_bf16_f32 %s, %s, %s' % (vr(d), vr(t0), vr(t1)))
            p('v_cvt_pk_bf16_f32 %s, %s, %s' % (vr(d + 1), vr(t2), vr(t3)))
            p('v_permlane16_swap_b32 %s, %s' % (vr(d), vr(d + 2)))
            p('v_permlane16_swap_b32 %s, %s' % (vr(d + 1), vr(d + 3)))
            p('v_permlane32_swap_b32 %s, %s' % (vr(d), vr(d + 2)))
            p('v_permlane32_swap_b32 %s, %s' % (vr(d + 1), vr(d + 3)))
            p('buffer_store_dwordx4 %s, %s, %s, %s offen offset:%d sc1' % (vr(d, 4), vr(vVo), sr(S_WS, 4), sr(sKVO), 2048 + 640 * u), tag='kv')
    if k == 9:
        p('v_lshlrev_b32 %s, 2, v0' % vr(t0))
        p('buffer_load_dword %s, %s, %s, 0 offen sc1' % (vr(vHello), vr(t0), sr(S_DBG, 4)))
    if k == 10:
        p.waitvm('kv')
        p('buffer_store_dword %s, %s, %s, %s offen offset:%d sc1' % (vr(vZero), vr(vL0), sr(S_WS, 4), sr(sFLG), L_KV))
for s in range(4 - LAG, 4):
    p1_mfma(11, s)
stamp()
lp, ld = p.newlabel('hello'), p.newlabel('helloed')
p('s_mov_b32 %s, %s' % (sr(sSPIN), hx(SPIN)))
p.label(lp)
p('v_and_b32 %s, 0x80808080, %s' % (vr(t1), vr(vHello)))
p('v_cmp_ne_u32 vcc, 0x80808080, %s' % vr(t1))
p('s_cbranch_vccz %s' % ld)
p('v_lshlrev_b32 %s, 2, v0' % vr(t0))
p('buffer_load_dword %s, %s, %s, 0 offen sc1' % (vr(vHello), vr(t0), sr(S_DBG, 4)))
p('s_sub_u32 %s, %s, 1' % (sr(sSPIN), sr(sSPIN)))
p('s_cbranch_scc0 %s' % lp)
p.label(ld)
p('s_and_b32 %s, %s, 3' % (sr(sA), sr(sXS)))
p('s_lshl_b32 %s, %s, 3' % (sr(sA), sr(sA)))
p('v_bfe_u32 %s, %s, %s, 4' % (vr(t1), vr(vHello), sr(sA)))
p('v_cmp_ne_u32 vcc, %s, %s' % (sr(sXCC), vr(t1)))
p('s_lshr_b32 %s, %s, 2' % (sr(sA), sr(sXS)))
p('s_and_b32 %s, %s, 3' % (sr(sB), sr(sT)))
p('s_lshl_b32 %s, %s, 4' % (sr(sB), sr(sB)))
p('s_add_u32 %s, %s, %s' % (sr(sA), sr(sA), sr(sB)))
p('s_mov_b32 %s, 0x5555' % sr(sC))
p('s_mov_b32 %s, 0' % sr(sD))
p('s_lshl_b64 %s, %s, %s' % (sr(sC, 2), sr(sC, 2), sr(sA)))
p('s_and_b64 %s, %s, vcc' % (sr(sC, 2), sr(sC, 2)))
p('s_cselect_b32 %s, 0, %d' % (sr(sFAST), 0 if OPT['force_slow'] else 1))
V.rel(vHello)

vKr = V(32)
poll(['buffer_load_dword %s, %s, %s, 0 offen sc1' % (vr(t0), vr(vPoll), sr(S_WS, 4))], [t0])
stamp()
for d in range(1, 5):
    for b in (1, 0):
        p('buffer_load_dwordx4 %s, %s, %s, %s offen offset:%d sc1' % (vr(vKr + 8 * (d - 1) + 4 * b, 4), vr(vL16), sr(S_WS, 4), sr(sKVR + d - 1), 1024 * b))
        for u in (2 * b, 2 * b + 1):
            p('buffer_load_dwordx4 %s, %s, %s, %s offen offset:%d sc1' % (ar(16 * (d - 1) + 4 * u, 4), vr(vVo), sr(S_WS, 4), sr(sKVR + d - 1), 2048 + 640 * u))
vXres = V(8)
p('s_lshr_b32 %s, %s, 10' % (sr(sA), sr(sTILE)))
p('v_add_u32 %s, %s, %s' % (vr(t0), sr(sA), vr(vJ)))
p('v_lshlrev_b32 %s, 10, %s' % (vr(t0), vr(t0)))
p('v_lshl_add_u32 %s, %s, 3, %s' % (vr(t0), vr(vG), vr(t0)))
p('s_lshl_b32 %s, %s, 7' % (sr(sA), sr(sM)))
for jt in range(4):
    p('buffer_load_dwordx2 %s, %s, %s, %s offen offset:%d' % (vr(vXres + 2 * jt, 2), vr(t0), sr(S_X, 4), sr(sA), 32 * jt))


def dma_w64(srd, region, perm, tag):
    if perm == 'o':
        p('s_and_b32 %s, %s, 1' % (sr(sA), sr(sW)))
        p('s_lshl_b32 %s, %s, 4' % (sr(sA), sr(sA)))
        p('s_lshr_b32 %s, %s, 1' % (sr(sB), sr(sW)))
        p('s_lshl_b32 %s, %s, 3' % (sr(sB), sr(sB)))
        p('s_add_u32 %s, %s, %s' % (sr(sA), sr(sA), sr(sB)))
    else:
        p('s_lshl_b32 %s, %s, 3' % (sr(sA), sr(sW)))
    p('v_add_u32 %s, %s, %s' % (vr(vWt), sr(sA), vr(vJr)))
    p('v_lshl_add_u32 %s, %s, 10, %s' % (vr(vWt), vr(vWt), vr(vSw)))
    for G in range(4):
        setm0(sW4K, region + G * CH)
        if G:
            p('v_add_u32 %s, 0x20000, %s' % (vr(vWt), vr(vWt)))
        for s in range(4):
            dma(vWt, srd, '0' if s == 0 else sr(sC1 + s - 1), 1024 * s, tag)


RA, RB = 0, 65536
p('s_barrier')
dma_w64(S_WO, RA, 'o', 'wo')
dma_w64(S_W1, RB, 'p', 'w1')

QS = f2u(0.25 * math.log2(math.e))
for i in range(8):
    p('v_mul_f32 %s, %s, %s' % (vr(vRM + i), hx(QS), vr(vRM + i)))
col_epilogue(vAccA, vCsA, vQ)
for b in (vWb[0], vWb[1], vSb[0], vSb[1], vAccA, vAccB):
    V.rel(b, 16)
for b in (vCsA, vCsB, vSum, vGram):
    V.rel(b, 4)
V.rel(vRM, 8)
V.rel(vTrP, 3)
for b in (vXs, vXo, vWo, vVc):
    V.rel(b)

vS = [V(16), V(16)]
vP = V(8)
vO = [V(16), V(16)]
jobs = [(0, vr(vK, 4), [vr(vVf, 4), vr(vVf + 4, 4)], vr(vCd, 16), 0),
        (1, vr(vK, 4), [vr(vVf, 4), vr(vVf + 4, 4)], '0', 0),
        (1, vr(vK + 4, 4), [vr(vVf + 8, 4), vr(vVf + 12, 4)], vr(vCd, 16), 0)]
for d in range(1, 5):
    for b in (1, 0):
        for qb in (0, 1):
            c = '0'
            if d == 4:
                if b == 0 and qb == 1:
                    continue
                if (b == 1 and qb == 1) or (b == 0 and qb == 0):
                    c = vr(vCf, 16)
            jobs.append((qb, vr(vKr + 8 * (d - 1) + 4 * b, 4), [ar(16 * (d - 1) + 8 * b, 4), ar(16 * (d - 1) + 8 * b + 4, 4)], c, d))
assert len(jobs) == 18
ATT_END = 'att_end'


def s_mfma(n):
    qb, K, _, c, _ = jobs[n]
    mf32(vr(vS[n & 1], 16), K, vr(vQ + 4 * qb, 4), c)


s_mfma(0)
seen = set()
for n, (qb, K, Vv, c, d) in enumerate(jobs):
    if n > 0 and jobs[n - 1][4] != d:
        p('s_cmp_lt_u32 %s, %d' % (sr(sT), d))
        p('s_cbranch_scc1 %s' % ATT_END)
    S = vS[n & 1]
    for half in range(2):
        for r in range(8 * half, 8 * half + 8):
            p('v_exp_f32 %s, %s' % (vr(S + r), vr(S + r)))
            if half == 0 and r == 1 and n + 1 < len(jobs):
                s_mfma(n + 1)
        for i in range(4):
            p('v_cvt_pk_bf16_f32 %s, %s, %s' % (vr(vP + 4 * half + i), vr(S + 8 * half + 2 * i), vr(S + 8 * half + 2 * i + 1)))
        O = vr(vO[qb], 16)
        mf32(O, Vv[half], vr(vP + 4 * half, 4), O if (qb in seen or half) else '0')
    seen.add(qb)
p.label(ATT_END)
stamp()
LO, HI = f2u(2.0 ** -64), f2u(2.0 ** 64)
p('s_mov_b32 %s, %s' % (sr(sA), hx(LO)))
p('s_mov_b32 %s, %s' % (sr(sB), hx(HI)))
p('v_cmp_nle_f32 vcc, %s, %s' % (sr(sA), vr(vO[0] + 8)))
p('v_cmp_nge_f32 %s, %s, %s' % (sr(sC, 2), sr(sB), vr(vO[0] + 8)))
p('s_or_b64 vcc, vcc, %s' % sr(sC, 2))
p('v_cmp_nle_f32 %s, %s, %s' % (sr(sC, 2), sr(sA), vr(vO[1] + 8)))
p('s_or_b64 vcc, vcc, %s' % sr(sC, 2))
p('v_cmp_nge_f32 %s, %s, %s' % (sr(sC, 2), sr(sB), vr(vO[1] + 8)))
p('s_or_b64 vcc, vcc, %s' % sr(sC, 2))
if OPT['force_fb']:
    p('s_branch SAFE_SOFTMAX')
else:
    p('s_cbranch_vccnz SAFE_SOFTMAX')
p.label('SOFTMAX_DONE')
fb_regs = dict(S=vS[0], K=vS[1], Vv=vS[1] + 4, M=vS[1] + 12, D=vS[1] + 13, T=vS[1] + 14, P=vP, O=list(vO), Q=vQ, Vo=vVo, Qm=vQm)
p('s_lshl_b32 %s, %s, 16' % (sr(sA), sr(sT)))
p('s_lshl_b32 %s, %s, 11' % (sr(sB), sr(sM)))
p('s_add_u32 %s, %s, %s' % (sr(sA), sr(sA), sr(sB)))
p('s_lshr_b32 %s, %s, 1' % (sr(sB), sr(sW)))
p('s_lshl_b32 %s, %s, 10' % (sr(sB), sr(sB)))
p('s_add_u32 %s, %s, %s' % (sr(sA), sr(sA), sr(sB)))
p('s_and_b32 %s, %s, 1' % (sr(sB), sr(sW)))
p('s_lshl_b32 %s, %s, 9' % (sr(sB), sr(sB)))
p('s_add_u32 %s, %s, %s' % (sr(sA), sr(sA), sr(sB)))
p('s_add_u32 %s, %s, %s' % (sr(sA), sr(sA), hx(OB)))
p('s_add_u32 %s, %s, 0x8000' % (sr(sB), sr(sA)))
p('v_bfe_u32 %s, v0, 4, 1' % vr(t0))
p('v_lshrrev_b32 %s, 5, v0' % vr(t1))
p('v_lshlrev_b32 %s, 14, %s' % (vr(t0), vr(t0)))
p('v_lshl_add_u32 %s, %s, 8, %s' % (vr(t0), vr(t1), vr(t0)))
p('v_lshl_add_u32 %s, %s, 4, %s' % (vr(t0), vr(vJ), vr(t0)))
for qb in range(2):
    O = vO[qb]
    p('v_rcp_f32 %s, %s' % (vr(O + 8), vr(O + 8)))
    for i in range(4):
        p('v_pk_mul_f32 %s, %s, %s op_sel_hi:[1,0]' % (vr(O + 2 * i, 2), vr(O + 2 * i, 2), vr(O + 8, 2)))
    for i in range(4):
        p('v_cvt_pk_bf16_f32 %s, %s, %s' % (vr(vP + 4 * qb + i), vr(O + 2 * i), vr(O + 2 * i + 1)))
dual_store(['buffer_store_dwordx4 %s, %s, %s, %s offen' % (vr(vP + 4 * qb, 4), vr(t0), sr(S_WS, 4), sr(sA + qb)) for qb in range(2)], 'st')
for b in (vS[0], vS[1], vO[0], vO[1], vCd, vCf, vVf):
    V.rel(b, 16)
V.rel(vKr, 32)
for b in (vK, vQ):
    V.rel(b, 8)
for b in (vVo, vQm):
    V.rel(b)
V.rel(vP, 8)

vTr = V(4, 1)
vB = V(64)
vH = V(16)
vAcc = V(16)
vCs = V(16)
vF = V(8)
vSt = V(8)
vMu, vR = V(1), V(1)


def wa(s, jt):
    return ar((s * 4 + jt) * 4, 4)


def capture(region, s0, s1, cs=False):
    for s in range(s0, s1):
        for jt in range(4):
            for hh in range(2):
                p('ds_read_b64_tr_b16 %s, %s offset:%d' % (ar((s * 4 + jt) * 4 + 2 * hh, 2), vr(vTr + jt), CH * (s >> 2) + 8192 * hh + 1024 * (s & 3)))
        if cs and s > 0:
            cs_mfma(s - 1)
    if cs and s1 == 16:
        cs_mfma(15)


def cs_mfma(s):
    for jt in range(4):
        d = vr(vCs + 4 * jt, 4)
        mf16(d, wa(s, jt), ONES, '0' if s == 0 else d)


def set_tr(region):
    for jt in range(4):
        p('v_xor_b32 %s, %d, %s' % (vr(vTr + jt), 32 * jt, vr(vTr0)))
        if region:
            p('v_add_u32 %s, %s, %s' % (vr(vTr + jt), hx(region), vr(vTr + jt)))


def flag_store(line):
    p.waitvm('st')
    dual_store(['buffer_store_dword %s, %s, %s, %s offen offset:%d' % (vr(vZero), vr(vL0), sr(S_WS, 4), sr(sFLG), line)], 'fl')


def stat_flag(line):
    p.waitvm('st')
    dual_store(['buffer_store_dwordx2 %s, %s, %s, %s offen offset:%d' % (vr(vSt, 2), vr(vStat), sr(S_WS, 4), sr(sFLG), line)], 'fl')


def load_frags(base, voffs=None):
    for P in range(4):
        if voffs is None:
            p('s_add_u32 %s, %s, %s' % (sr(sA), sr(sTILE), hx(base + 4096 * P)))
            vo = vL16
        else:
            p('s_mov_b32 %s, %s' % (sr(sA), hx(4096 * P)))
            vo = voffs + P
        for s in range(4):
            p('buffer_load_dwordx4 %s, %s, %s, %s offen offset:%d sc1' % (vr(vB + 16 * P + 4 * s, 4), vr(vo), sr(S_WS, 4), sr(sA), 1024 * s))


def gemm64(acc):
    for s in range(16):
        for jt in range(4):
            d = vr(acc + 4 * jt, 4)
            mf16(d, wa(s, jt), vr(vB + 4 * s, 4), d)


def publish(acc, base, stats):
    for i in range(8):
        p('v_cvt_pk_bf16_f32 %s, %s, %s' % (vr(vF + i), vr(acc + 2 * i), vr(acc + 2 * i + 1)))
    p('s_lshl_b32 %s, %s, 11' % (sr(sA), sr(sM)))
    p('s_add_u32 %s, %s, %s' % (sr(sA), sr(sA), sr(sTILE)))
    p('s_add_u32 %s, %s, %s' % (sr(sB), sr(sA), hx(base)))
    dual_store(['buffer_store_dwordx4 %s, %s, %s, %s offen offset:%d' % (vr(vF + 4 * u, 4), vr(vL16), sr(S_WS, 4), sr(sB), 1024 * u) for u in range(2)], 'st')
    if stats:
        mf16(vr(vSt + 4, 4), vr(vF, 4), vr(vF, 4), '0')
        mf16(vr(vSt, 4), ONES, vr(vF, 4), '0')
        mf16(vr(vSt + 4, 4), vr(vF + 4, 4), vr(vF + 4, 4), vr(vSt + 4, 4))
        mf16(vr(vSt, 4), ONES, vr(vF + 4, 4), vr(vSt, 4))
        diag_select(vSt + 1, vSt + 4)
        p('v_and_b32 %s, -2, %s' % (vr(vSt + 1), vr(vSt + 1)))


def reduce_stats(a, b):
    p('v_add_f32 %s, %s, %s' % (vr(a), vr(a), vr(b)))
    p('v_add_f32 %s, %s, %s' % (vr(a + 1), vr(a + 1), vr(b + 1)))
    p('v_permlane32_swap_b32 %s, %s' % (vr(a), vr(a + 1)))
    p('v_add_f32 %s, %s, %s' % (vr(a), vr(a), vr(a + 1)))
    p('v_mov_b32 %s, %s' % (vr(a + 1), vr(a)))
    p('v_permlane16_swap_b32 %s, %s' % (vr(a), vr(a + 1)))
    p('v_add_f32 %s, %s, %s' % (vr(a), vr(a), vr(a + 1)))
    p('v_mov_b32 %s, %s' % (vr(a + 1), vr(a)))
    p('v_permlane32_swap_b32 %s, %s' % (vr(a), vr(a + 1)))


C0 = -2.0 * math.log2(math.e) * math.sqrt(2.0 / math.pi)
C1 = C0 * 0.044715


def gelu_consts(kk, ir, scale):
    p('v_mul_f32 %s, %s, %s' % (vr(kk), hx(f2u(C0)), vr(scale)))
    p('v_mul_f32 %s, %s, %s' % (vr(kk + 1), vr(scale), vr(scale)))
    p('v_mul_f32 %s, %s, %s' % (vr(kk + 1), vr(kk + 1), vr(kk)))
    p('v_mul_f32 %s, %s, %s' % (vr(kk + 1), hx(f2u(0.044715)), vr(kk + 1)))
    p('v_rcp_f32 %s, %s' % (vr(ir), vr(scale)))


def gelu4(a, kk, ir, tm):
    for h in (0, 2):
        p('v_pk_mul_f32 %s, %s, %s' % (vr(tm + h, 2), vr(a + h, 2), vr(a + h, 2)))
    for h in (0, 2):
        p('v_pk_fma_f32 %s, %s, %s, %s op_sel:[0,1,0] op_sel_hi:[1,1,0]' % (vr(tm + h, 2), vr(tm + h, 2), vr(kk, 2), vr(kk, 2)))
    for h in (0, 2):
        p('v_pk_mul_f32 %s, %s, %s' % (vr(tm + h, 2), vr(tm + h, 2), vr(a + h, 2)))
    for i in range(4):
        p('v_exp_f32 %s, %s' % (vr(tm + i), vr(tm + i)))
    for h in (0, 2):
        p('v_pk_fma_f32 %s, %s, %s, %s op_sel_hi:[1,0,0]' % (vr(tm + h, 2), vr(tm + h, 2), vr(ir, 2), vr(ir, 2)))
    for i in range(4):
        p('v_rcp_f32 %s, %s' % (vr(tm + i), vr(tm + i)))
    for h in (0, 2):
        p('v_pk_mul_f32 %s, %s, %s' % (vr(a + h, 2), vr(a + h, 2), vr(tm + h, 2)))


set_tr(RA)
p.waitvm('wo')
p('s_barrier')
capture(RA, 0, 8)
flag_store(L_O)
capture(RA, 8, 16)
for jt in range(4):
    for h in range(2):
        p('v_lshlrev_b32 %s, 16, %s' % (vr(vH + 4 * jt + 2 * h), vr(vXres + 2 * jt + h)))
        p('v_and_b32 %s, 0xffff0000, %s' % (vr(vH + 4 * jt + 2 * h + 1), vr(vXres + 2 * jt + h)))
V.rel(vXres, 8)
p('s_lshl_b32 %s, %s, 15' % (sr(sA), sr(sT)))
p('s_add_u32 %s, %s, %s' % (sr(sA), sr(sA), hx(FLG + L_O)))
p('v_lshlrev_b32 %s, 10, v0' % vr(t0))
p('v_mov_b32 %s, %s' % (vr(t1), hx(OOB)))
p('v_cmp_gt_u32 vcc, 32, v0')
p('v_cndmask_b32 %s, %s, %s, vcc' % (vr(vPoll), vr(t1), vr(t0)))
bar()
stamp()
poll(['buffer_load_dword %s, %s, %s, %s offen sc1' % (vr(t0), vr(vPoll), sr(S_WS, 4), sr(sA))], [t0])
load_frags(OB)
dma_w64(S_W2, RA, 'p', 'w2')
gemm64(vH)
publish(vH, HB, True)
stamp()

if OPT['stop'] > 3:
    vKK, vIr, vTm = V(2), V(2), V(4)
    set_tr(RB)
    p.waitvm('w1')
    p('s_barrier')
    capture(RB, 0, 8, cs=True)
    stat_flag(L_H)
    capture(RB, 8, 16, cs=True)
    vSp = V(1)
    p('v_lshlrev_b32 %s, 12, %s' % (vr(vSp), vr(vG)))
    p('v_lshl_add_u32 %s, %s, 3, %s' % (vr(vSp), vr(vJ), vr(vSp)))
    p('s_lshl_b32 %s, %s, 15' % (sr(sA), sr(sT)))
    p('s_lshl_b32 %s, %s, 10' % (sr(sB), sr(sW)))
    p('s_add_u32 %s, %s, %s' % (sr(sA), sr(sA), sr(sB)))
    p('s_add_u32 %s, %s, %s' % (sr(sA), sr(sA), hx(FLG)))
    p('s_add_u32 %s, %s, 0x4000' % (sr(sB), sr(sA)))
    bar()
    poll(['buffer_load_dwordx2 %s, %s, %s, %s offen offset:%d sc1' % (vr(vSt + 2 * i, 2), vr(vSp), sr(S_WS, 4), sr(sA + i), L_H) for i in range(2)],
         [vSt + 1, vSt + 3])
    load_frags(HB)
    vW3 = V(7, 1)
    SLOT = [65536, 65536 + 28672, 65536 + 2 * 28672, 0, 28672]
    p('s_lshr_b32 %s, %s, 1' % (sr(sA), sr(sW)))
    p('s_lshl_b32 %s, %s, 5' % (sr(sA), sr(sA)))
    p('s_and_b32 %s, %s, 1' % (sr(sB), sr(sW)))
    p('s_lshl_b32 %s, %s, 4' % (sr(sB), sr(sB)))
    p('s_add_u32 %s, %s, %s' % (sr(sA), sr(sA), sr(sB)))
    p('s_mul_i32 %s, %s, 448' % (sr(sB), sr(sM)))
    for a in range(7):
        p('v_add_u32 %s, %d, v0' % (vr(t0), 64 * a) if a else 'v_mov_b32 %s, v0' % vr(t0))
        p('v_mul_u32_u24 %s, 0x925, %s' % (vr(t1), vr(t0)))
        p('v_lshrrev_b32 %s, 16, %s' % (vr(t1), vr(t1)))
        p('v_mul_u32_u24 %s, 28, %s' % (vr(t2), vr(t1)))
        p('v_sub_u32 %s, %s, %s' % (vr(t0), vr(t0), vr(t2)))
        p('v_lshrrev_b32 %s, 1, %s' % (vr(t2), vr(t1)))
        p('v_and_b32 %s, 2, %s' % (vr(t2), vr(t2)))
        p('v_xor_b32 %s, %s, %s' % (vr(t0), vr(t0), vr(t2)))
        p('v_add_u32 %s, %s, %s' % (vr(t1), sr(sA), vr(t1)))
        p('v_mul_u32_u24 %s, 0xe00, %s' % (vr(t1), vr(t1)))
        p('v_lshl_add_u32 %s, %s, 4, %s' % (vr(t0), vr(t0), vr(t1)))
        p('v_add_u32 %s, %s, %s' % (vr(t0), sr(sB), vr(t0)))
        p('v_subrev_u32 %s, %d, %s' % (vr(vW3 + a), 1024 * (a & 3), vr(t0)))
    sW7K = sKVR
    p('s_mul_i32 %s, %s, 7168' % (sr(sW7K), sr(sW)))

    def dma_w3(unit, slot):
        p('s_mov_b32 %s, %s' % (sr(sA), hx(unit * 64 * 3584)))
        for a in range(7):
            if a % 4 == 0:
                setm0(sW7K, SLOT[slot] + 1024 * a)
            dma(vW3 + a, S_W3, sr(sA), 1024 * (a & 3), 'u%d' % unit)

    for un in range(3):
        dma_w3(un, un)
    reduce_stats(vSt, vSt + 2)
    mean_rstd(vMu, vR, vSt, vSt + 1)
    p('v_mul_f32 %s, %s, %s' % (vr(t0), vr(vR), vr(vR)))
    p('v_mul_f32 %s, %s, %s' % (vr(t0), vr(t0), vr(vSt + 1)))
    p('v_add_f32 %s, %s, %s' % (vr(t0), hx(EPS), vr(t0)))
    p('v_rsq_f32 %s, %s' % (vr(t0), vr(t0)))
    p('v_mul_f32 %s, %s, %s' % (vr(t0), vr(t0), vr(vR)))
    gelu_consts(vKK, vIr, t0)
    for i in range(16):
        p('v_mul_f32 %s, -%s, %s' % (vr(vAcc + i), vr(vMu), vr(vCs + i)))
    gemm64(vAcc)
    for jt in range(4):
        gelu4(vAcc + 4 * jt, vKK, vIr, vTm)
    publish(vAcc, GB, False)
    p('s_bitcmp1_b32 %s, 1' % sr(sM))
    p('s_cselect_b32 %s, 0, 3' % sr(sC))
    p('s_cselect_b32 %s, 0, 14' % sr(sD))
    p('s_cmp_eq_u32 %s, %s' % (sr(sC), sr(sW)))
    p('s_cselect_b32 %s, %s, 16' % (sr(sD), sr(sD)))
    p('v_and_b32 %s, 14, v0' % vr(t0))
    p('v_cmp_eq_u32 vcc, %s, %s' % (sr(sD), vr(t0)))
    p('v_mov_b32 %s, %s' % (vr(t1), hx(OOB)))
    p('v_cndmask_b32 %s, %s, %s, vcc' % (vr(t1), vr(t1), vr(vL16)))
    p('s_add_u32 %s, %s, %s' % (sr(sB), sr(sA), hx(GH)))
    for u in range(2):
        p('buffer_store_dwordx4 %s, %s, %s, %s offen offset:%d sc1' % (vr(vF + 4 * u, 4), vr(t1), sr(S_WS, 4), sr(sB), 1024 * u), tag='halo')
    stamp()

if OPT['stop'] > 4:
    set_tr(RA)
    p.waitvm('w2')
    p('s_barrier')
    capture(RA, 0, 8)
    flag_store(L_G)
    capture(RA, 8, 12)
    p.waitvm('halo')
    p('buffer_store_dword %s, %s, %s, %s offen offset:%d sc1' % (vr(vZero), vr(vL0), sr(S_WS, 4), sr(sFLG), L_HALO))
    capture(RA, 12, 16)
    p('v_mul_f32 %s, -%s, %s' % (vr(t0), vr(vMu), vr(vR)))
    for i in range(16):
        p('v_fma_f32 %s, %s, %s, %s' % (vr(vAcc + i), vr(vH + i), vr(vR), vr(t0)))
    p('v_and_b32 %s, 2, v0' % vr(t0))
    p('v_subrev_u32 %s, 1, %s' % (vr(t0), vr(t0)))
    p('v_cmp_gt_u32 vcc, 8, v0')
    p('v_cndmask_b32 %s, %s, %s, vcc' % (vr(t0), vr(t0), vr(vZero)))
    p('s_lshr_b32 %s, %s, 14' % (sr(sA), sr(sTILE)))
    p('v_add_u32 %s, %s, %s' % (vr(t0), sr(sA), vr(t0)))
    p('v_lshrrev_b32 %s, 2, %s' % (vr(t1), vr(t0)))
    p('v_cmp_eq_u32 vcc, %s, %s' % (sr(sT), vr(t1)))
    p('v_mov_b32 %s, %d' % (vr(t2), L_HALO))
    p('v_mov_b32 %s, %d' % (vr(t3), L_G))
    p('v_cndmask_b32 %s, %s, %s, vcc' % (vr(t2), vr(t2), vr(t3)))
    p('v_lshl_add_u32 %s, %s, 15, %s' % (vr(t2), vr(t1), vr(t2)))
    p('v_and_b32 %s, 3, %s' % (vr(t1), vr(t0)))
    p('v_lshl_add_u32 %s, %s, 10, %s' % (vr(t2), vr(t1), vr(t2)))
    p('v_and_b32 %s, 7, v0' % vr(t1))
    p('v_lshl_add_u32 %s, %s, 12, %s' % (vr(t2), vr(t1), vr(t2)))
    p('v_mov_b32 %s, %s' % (vr(t1), hx(OOB)))
    p('v_cmp_gt_u32 vcc, 0x80, %s' % vr(t0))
    p('v_cndmask_b32 %s, %s, %s, vcc' % (vr(t2), vr(t1), vr(t2)))
    p('v_cmp_gt_u32 vcc, 16, v0')
    p('v_cndmask_b32 %s, %s, %s, vcc' % (vr(vPoll), vr(t1), vr(t2)))
    vSh = V(4, 1)
    p('s_lshr_b32 %s, %s, 10' % (sr(sA), sr(sTILE)))
    for P, dl in enumerate((-1, 1, -2, 2)):
        p('v_add_u32 %s, %s, %s' % (vr(t0), sr(sA), vr(vJ)))
        p('v_add_u32 %s, %d, %s' % (vr(t0), dl, vr(t0)))
        p('v_lshrrev_b32 %s, 6, %s' % (vr(t1), vr(t0)))
        p('v_cmp_eq_u32 vcc, %s, %s' % (sr(sT), vr(t1)))
        p('v_mov_b32 %s, %s' % (vr(t2), hx(GH)))
        p('v_mov_b32 %s, %s' % (vr(t3), hx(GB)))
        p('v_cndmask_b32 %s, %s, %s, vcc' % (vr(t2), vr(t2), vr(t3)))
        p('v_lshrrev_b32 %s, 4, %s' % (vr(t1), vr(t0)))
        p('v_lshl_add_u32 %s, %s, 14, %s' % (vr(t2), vr(t1), vr(t2)))
        p('v_and_b32 %s, 15, %s' % (vr(t1), vr(t0)))
        p('v_lshl_add_u32 %s, %s, 4, %s' % (vr(t2), vr(t1), vr(t2)))
        p('v_lshl_add_u32 %s, %s, 8, %s' % (vr(t2), vr(vG), vr(t2)))
        p('v_mov_b32 %s, %s' % (vr(t1), hx(OOB)))
        p('v_cmp_gt_u32 vcc, 0x800, %s' % vr(t0))
        p('v_cndmask_b32 %s, %s, %s, vcc' % (vr(vSh + P), vr(t1), vr(t2)))
    p('s_mov_b32 %s, %s' % (sr(sA), hx(FLG)))
    bar()
    poll(['buffer_load_dword %s, %s, %s, %s offen sc1' % (vr(t0), vr(vPoll), sr(S_WS, 4), sr(sA))], [t0])
    load_frags(None, vSh)
    gemm64(vAcc)
    publish(vAcc, XB, True)
    for i in range(8):
        p('v_pk_add_f32 %s, %s, %s' % (vr(vH + 2 * i, 2), vr(vH + 2 * i, 2), vr(vAcc + 2 * i, 2)))
    V.rel(vSh, 4)
    stamp()

if OPT['stop'] > 5:
    stat_flag(L_X)
    V.rel(vB, 64)
    V.rel(vAcc, 16)
    V.rel(vCs, 16)
    V.rel(vTr, 4)
    V.rel(vF, 8)
    vA6, vC6 = V(56), V(28)
    vAa, vAb, vAt = V(2, 1), V(1), V(2, 1)
    vX6 = V(1)
    vKK2, vIr2, vMu2 = V(2), V(2), V(2)
    p('s_and_b32 %s, %s, 1' % (sr(sA), sr(sW)))
    p('v_lshrrev_b32 %s, 2, v0' % vr(t0))
    p('v_mul_u32_u24 %s, 0x1c0, %s' % (vr(t0), vr(t0)))
    p('v_and_b32 %s, 3, v0' % vr(t1))
    p('v_lshl_add_u32 %s, %s, 3, %s' % (vr(t0), vr(t1), vr(t0)))
    p('s_mul_i32 %s, %s, 224' % (sr(sB), sr(sA)))
    p('v_add_u32 %s, %s, %s' % (vr(t0), sr(sB), vr(t0)))
    p('v_and_b32 %s, 16, v0' % vr(t1))
    p('v_lshlrev_b32 %s, 1, %s' % (vr(t1), vr(t1)))
    p('s_cmp_eq_u32 %s, 0' % sr(sA))
    p('s_cselect_b32 %s, 1, -1' % sr(sB))
    p('v_mul_i32_i24 %s, %s, %s' % (vr(t1), sr(sB), vr(t1)))
    p('v_add_u32 %s, %s, %s' % (vr(vAa), vr(t0), vr(t1)))
    p('v_sub_u32 %s, %s, %s' % (vr(vAa + 1), vr(t0), vr(t1)))
    p('s_lshr_b32 %s, %s, 1' % (sr(sC), sr(sW)))
    p('s_lshl_b32 %s, %s, 15' % (sr(sB), sr(sC)))
    p('v_add_u32 %s, %s, %s' % (vr(vX6), sr(sB), vr(vL16)))
    p('s_lshl_b32 %s, %s, 15' % (sr(sA), sr(sT)))
    p('s_lshl_b32 %s, %s, 11' % (sr(sB), sr(sC)))
    p('s_add_u32 %s, %s, %s' % (sr(sA), sr(sA), sr(sB)))
    p('s_add_u32 %s, %s, %s' % (sr(sA), sr(sA), hx(FLG)))
    p('s_add_u32 %s, %s, 0x4000' % (sr(sB), sr(sA)))
    poll(['buffer_load_dwordx2 %s, %s, %s, %s offen offset:%d sc1' % (vr(vSt + 4 * tk + 2 * i, 2), vr(vSp), sr(S_WS, 4), sr(sA + i), L_X + 1024 * tk)
          for tk in range(2) for i in range(2)], [vSt + 1, vSt + 3, vSt + 5, vSt + 7])
    stamp()
    lf = p.newlabel('noinv')
    p('s_cmp_lg_u32 %s, 0' % sr(sFAST))
    p('s_cbranch_scc1 %s' % lf)
    p('buffer_inv sc1')
    p('s_waitcnt vmcnt(0)')
    p.label(lf)
    p('s_lshl_b32 %s, %s, 14' % (sr(sC), sr(sW)))
    XG = [0] * 4 + [1] * 6 + [2] * 6
    for s in range(16):
        if s % 4 == 0:
            setm0(sC, 1024 * s)
            p('s_add_u32 %s, %s, %s' % (sr(sA), sr(sTILE), hx(XB + 1024 * s)))
        dma(vL16, S_WS, sr(sA), 1024 * (s & 3), 'x%d' % XG[s], sc1=True)
    for tk in range(2):
        reduce_stats(vSt + 4 * tk, vSt + 4 * tk + 2)
        mean_rstd((vMu, vMu2)[tk], t0, vSt + 4 * tk, vSt + 4 * tk + 1)
        gelu_consts((vKK, vKK2)[tk], (vIr, vIr2)[tk], t0)
    p('v_mov_b32 %s, %s' % (vr(vMu2 + 1), vr(vMu)))
    vW4, vW4t = V(1), V(1)
    sS4 = sC3
    p('s_mul_i32 %s, %s, 224' % (sr(sA), sr(sM)))
    p('s_mul_i32 %s, %s, 56' % (sr(sB), sr(sW)))
    p('s_add_u32 %s, %s, %s' % (sr(sA), sr(sA), sr(sB)))
    p('v_add_u32 %s, %s, %s' % (vr(t0), sr(sA), vr(vJr)))
    p('v_lshlrev_b32 %s, 1, %s' % (vr(t1), vr(vJr)))
    p('v_and_b32 %s, 4, %s' % (vr(t1), vr(t1)))
    p('v_and_b32 %s, 7, v0' % vr(t2))
    p('v_xor_b32 %s, %s, %s' % (vr(t1), vr(t1), vr(t2)))
    p('v_lshlrev_b32 %s, 4, %s' % (vr(t1), vr(t1)))
    p('v_lshl_add_u32 %s, %s, 10, %s' % (vr(vW4), vr(t0), vr(t1)))
    for a in range(1, 7):
        p('s_mov_b32 %s, %s' % (sr(sS4 + a - 1), hx(8192 * a - 1024 * (a & 3))))

    def dma_w4(stage, slot):
        p('s_add_u32 %s, %s, %d' % (sr(sA), sr(sM), stage + 1))
        p('s_and_b32 %s, %s, 7' % (sr(sA), sr(sA)))
        p('s_lshl_b32 %s, %s, 7' % (sr(sA), sr(sA)))
        p('v_add_u32 %s, %s, %s' % (vr(vW4t), sr(sA), vr(vW4)))
        for a in range(7):
            if a % 4 == 0:
                setm0(sW7K, SLOT[slot] + 1024 * a)
            dma(vW4t, S_W4, '0' if a == 0 else sr(sS4 + a - 1), 1024 * (a & 3), 'v%d' % stage)

    USLOT = [0, 1, 2, 0, 1, 2, 3, 4]
    VSLOT = [0, 1, 2, 3, 4, 0, 1, 2]
    ABUF = [128, 156]

    def x6(s, tk):
        return ar((s * 2 + tk) * 4, 4)

    def w3_read(st, u):
        for hh in range(2):
            p('ds_read_b64_tr_b16 %s, %s offset:%d' % (ar(ABUF[st & 1] + 4 * u + 2 * hh, 2), vr(vAt + (u & 1)), 14336 * (st & 1) + 7168 * hh + 32 * u))

    def p6_mfma(st, u):
        A = ar(ABUF[st & 1] + 4 * u, 4)
        for tk in range(2):
            d = vr(vA6 + 8 * u + 4 * tk, 4)
            mf16(d, A, x6(st, tk), '0' if st == 0 else d)
        d = vr(vC6 + 4 * u, 4)
        mf16(d, A, ONES, '0' if st == 0 else d)

    for un in range(8):
        p.waitvm('u%d' % un, *(['x%d' % un] if un < 3 else []))
        bar()
        if un == 1:
            dma_w3(3, 0)
        if un == 2:
            dma_w3(4, 1)
        if un == 3:
            dma_w3(5, 2)
            dma_w3(6, 3)
            dma_w3(7, 4)
        if un >= 4:
            dma_w4(un - 4, VSLOT[un - 4])
        for i in range(2):
            p('v_add_u32 %s, %s, %s' % (vr(vAt + i), hx(SLOT[USLOT[un]]), vr(vAa + i)))
        if un < 3:
            xs = [s for s in range(16) if XG[s] == un]
            for s in xs[:2]:
                for tk in range(2):
                    p('ds_read_b128 %s, %s offset:%d' % (x6(s, tk), vr(vX6), 16384 * tk + 1024 * s))
        for u in range(7):
            w3_read(2 * un, u)
        if un < 3:
            for s in xs[2:]:
                for tk in range(2):
                    p('ds_read_b128 %s, %s offset:%d' % (x6(s, tk), vr(vX6), 16384 * tk + 1024 * s))
        for u in range(7):
            if un > 0:
                p6_mfma(2 * un - 1, u)
            w3_read(2 * un + 1, u)
        for u in range(7):
            p6_mfma(2 * un, u)
    for u in range(7):
        p6_mfma(15, u)
    stamp()
    p('s_barrier')
    UB = SLOT[4]
    H0, H1 = 57344, 151552
    p('s_and_b32 %s, %s, 1' % (sr(sA), sr(sW)))
    p('s_mul_i32 %s, %s, 14336' % (sr(sA), sr(sA)))
    p('s_lshr_b32 %s, %s, 1' % (sr(sB), sr(sW)))
    p('s_lshl_b32 %s, %s, 10' % (sr(sB), sr(sB)))
    p('s_add_u32 %s, %s, %s' % (sr(sA), sr(sA), sr(sB)))
    p('s_add_u32 %s, %s, %d' % (sr(sA), sr(sA), UB))
    p('v_lshrrev_b32 %s, 5, v0' % vr(t0))
    p('v_lshlrev_b32 %s, 9, %s' % (vr(t0), vr(t0)))
    p('v_lshl_add_u32 %s, %s, 4, %s' % (vr(t0), vr(vJ), vr(t0)))
    p('v_bfe_u32 %s, v0, 4, 1' % vr(t1))
    p('v_lshl_add_u32 %s, %s, 3, %s' % (vr(t0), vr(t1), vr(t0)))
    p('v_add_u32 %s, %s, %s' % (vr(vX6), sr(sA), vr(t0)))
    p('s_lshl_b32 %s, %s, 8' % (sr(sA), sr(sW)))
    p('v_lshl_add_u32 %s, %s, 4, %s' % (vr(t0), vr(vJ), sr(sA)))
    p('v_lshl_add_u32 %s, %s, 10, %s' % (vr(t0), vr(vG), vr(t0)))
    p('v_add_u32 %s, %s, %s' % (vr(t1), hx(H1), vr(t0)))
    for jt in range(4):
        if jt < 2:
            p('ds_write_b128 %s, %s offset:%d' % (vr(t0), vr(vH + 4 * jt, 4), H0 + 4096 * jt))
        else:
            p('ds_write_b128 %s, %s offset:%d' % (vr(t1), vr(vH + 4 * jt, 4), 4096 * (jt - 2)))
    vU = V(4)
    n = 0
    for u in range(7):
        for tk in range(2):
            a = vA6 + 8 * u + 4 * tk
            sel = 'op_sel:[0,1,0] op_sel_hi:[1,1,1]' if tk == 0 else 'op_sel_hi:[1,0,1]'
            for h in (0, 2):
                p('v_pk_fma_f32 %s, %s, %s, %s %s neg_lo:[0,1,0] neg_hi:[0,1,0]' % (vr(a + h, 2), vr(vC6 + 4 * u + h, 2), vr(vMu2, 2), vr(a + h, 2), sel))
            gelu4(a, (vKK, vKK2)[tk], (vIr, vIr2)[tk], vTm)
            d = vU + 2 * (n & 1)
            p('v_cvt_pk_bf16_f32 %s, %s, %s' % (vr(d), vr(a), vr(a + 1)))
            p('v_cvt_pk_bf16_f32 %s, %s, %s' % (vr(d + 1), vr(a + 2), vr(a + 3)))
            p('ds_write_b64 %s, %s offset:%d' % (vr(vX6), vr(d, 2), 2048 * u + 256 * tk))
            n += 1
    V.rel(vA6, 56)
    V.rel(vC6, 28)
    V.rel(vU, 4)
    bar()
    stamp()
    p('s_lshr_b32 %s, %s, 1' % (sr(sA), sr(sW)))
    p('s_lshl_b32 %s, %s, 10' % (sr(sB), sr(sA)))
    p('s_add_u32 %s, %s, %d' % (sr(sB), sr(sB), UB))
    p('v_add_u32 %s, %s, %s' % (vr(t0), sr(sB), vr(vL16)))
    for ft in range(14):
        p('ds_read_b128 %s, %s offset:%d' % (ar(4 * ft, 4), vr(t0), 2048 * ft))
    p('s_lshl_b32 %s, %s, 9' % (sr(sA), sr(sA)))
    p('s_bitcmp1_b32 %s, 0' % sr(sW))
    p('s_cselect_b32 %s, %s, 0' % (sr(sB), hx(H1 - H0)))
    p('s_add_u32 %s, %s, %s' % (sr(sA), sr(sA), sr(sB)))
    p('s_add_u32 %s, %s, %s' % (sr(sA), sr(sA), hx(H0)))
    p('v_and_b32 %s, 31, v0' % vr(t1))
    p('v_lshl_add_u32 %s, %s, 4, %s' % (vr(t1), vr(t1), sr(sA)))
    p('v_lshrrev_b32 %s, 5, v0' % vr(t2))
    p('v_lshl_add_u32 %s, %s, 10, %s' % (vr(t1), vr(t2), vr(t1)))
    for a in range(4):
        p('ds_read_b128 %s, %s offset:%d' % (vr(vH + 4 * a, 4), vr(t1), 2048 * a))
    vA7 = vAa
    p('v_bfe_u32 %s, v0, 2, 2' % vr(t0))
    p('v_lshl_add_u32 %s, %s, 3, %s' % (vr(t1), vr(t2), vr(t0)))
    p('v_lshlrev_b32 %s, 7, %s' % (vr(t1), vr(t1)))
    p('v_lshlrev_b32 %s, 5, %s' % (vr(t0), vr(t0)))
    p('v_and_b32 %s, 64, %s' % (vr(t0), vr(t0)))
    p('s_and_b32 %s, %s, 1' % (sr(sA), sr(sW)))
    p('s_lshl_b32 %s, %s, 6' % (sr(sA), sr(sA)))
    p('v_xor_b32 %s, %s, %s' % (vr(t0), sr(sA), vr(t0)))
    p('v_add_u32 %s, %s, %s' % (vr(t1), vr(t1), vr(t0)))
    p('v_and_b32 %s, 16, v0' % vr(t0))
    p('v_lshl_add_u32 %s, %s, 1, %s' % (vr(t1), vr(t0), vr(t1)))
    p('v_and_b32 %s, 3, v0' % vr(t0))
    p('v_lshl_add_u32 %s, %s, 3, %s' % (vr(vA7), vr(t0), vr(t1)))
    vAc7 = [V(16), V(16)]
    vPk = V(8)
    BUF7 = [64, 120]
    LAG7 = 2

    def p7_mfma(j, k):
        d = vr(vH if j == 7 else vAc7[j & 1], 16)
        mf32(d, ar(BUF7[j & 1] + 4 * k, 4), ar(4 * k, 4), '0' if (k == 0 and j < 7) else d)

    def p7_store(j):
        a = vAc7[j & 1]
        for i in range(8):
            p('v_cvt_pk_bf16_f32 %s, %s, %s' % (vr(vPk + i), vr(a + 2 * i), vr(a + 2 * i + 1)))
        p('s_add_u32 %s, %s, %d' % (sr(sA), sr(sM), j + 1))
        p('s_and_b32 %s, %s, 7' % (sr(sA), sr(sA)))
        p('s_lshl_b32 %s, %s, 16' % (sr(sA), sr(sA)))
        p('s_add_u32 %s, %s, %s' % (sr(sA), sr(sA), sr(sPS)))
        dual_store(['buffer_store_dwordx4 %s, %s, %s, %s offen offset:%d' % (vr(vPk + 4 * u, 4), vr(vL16), sr(S_WS, 4), sr(sA), 1024 * u) for u in range(2)], 'st')

    sPS = sKVO
    p('s_lshl_b32 %s, %s, 19' % (sr(sPS), sr(sT)))
    p('s_lshl_b32 %s, %s, 13' % (sr(sA), sr(sM)))
    p('s_add_u32 %s, %s, %s' % (sr(sPS), sr(sPS), sr(sA)))
    p('s_lshl_b32 %s, %s, 11' % (sr(sA), sr(sW)))
    p('s_add_u32 %s, %s, %s' % (sr(sPS), sr(sPS), sr(sA)))
    p('s_add_u32 %s, %s, %s' % (sr(sPS), sr(sPS), hx(PART)))
    for j in range(8):
        p.waitvm('v%d' % j)
        bar()
        if j < 4:
            dma_w4(j + 4, VSLOT[j + 4])
        p('v_add_u32 %s, %s, %s' % (vr(vAt), hx(SLOT[VSLOT[j]]), vr(vA7)))
        for k in range(14):
            for hh in range(2):
                p('ds_read_b64_tr_b16 %s, %s offset:%d' % (ar(BUF7[j & 1] + 4 * k + 2 * hh, 2), vr(vAt), 2048 * k + 512 * hh))
            if j > 0 and k == 5:
                for kk in range(14 - LAG7, 14):
                    p7_mfma(j - 1, kk)
        for k in range(14 - LAG7 if j < 7 else 2):
            p7_mfma(j, k)
            if j > 0 and k == 1:
                p7_store(j - 1)
    for k in range(2, 8):
        p7_mfma(7, k)
    flag_store(L_P)
    for k in range(8, 14):
        p7_mfma(7, k)
    stamp()
    vSel = V(8)
    p('v_and_b32 %s, 31, v0' % vr(t0))
    p('v_bfe_u32 %s, v0, 2, 1' % vr(t1))
    p('v_lshrrev_b32 %s, 5, v0' % vr(t2))
    p('v_cmp_eq_u32 vcc, %s, %s' % (vr(t1), vr(t2)))
    p('v_and_b32 %s, 1, v0' % vr(t1))
    p('v_lshlrev_b32 %s, 4, %s' % (vr(t1), vr(t1)))
    p('v_mov_b32 %s, 0x3f80' % vr(t2))
    p('v_lshlrev_b32 %s, %s, %s' % (vr(t1), vr(t1), vr(t2)))
    p('v_cndmask_b32 %s, %s, %s, vcc' % (vr(t1), vr(vZero), vr(t1)))
    p('v_lshrrev_b32 %s, 3, %s' % (vr(t2), vr(t0)))
    p('v_bfe_u32 %s, v0, 1, 1' % vr(t3))
    p('v_lshl_add_u32 %s, %s, 1, %s' % (vr(t2), vr(t2), vr(t3)))
    for i in range(8):
        p('v_cmp_eq_u32 vcc, %d, %s' % (i, vr(t2)))
        p('v_cndmask_b32 %s, %s, %s, vcc' % (vr(vSel + i), vr(vZero), vr(t1)))
    p('s_lshl_b32 %s, %s, 15' % (sr(sA), sr(sT)))
    p('s_lshl_b32 %s, %s, 10' % (sr(sB), sr(sW)))
    p('s_add_u32 %s, %s, %s' % (sr(sA), sr(sA), sr(sB)))
    p('s_add_u32 %s, %s, %s' % (sr(sA), sr(sA), hx(FLG + L_P)))
    p('v_lshlrev_b32 %s, 12, v0' % vr(t0))
    p('v_mov_b32 %s, %s' % (vr(t1), hx(OOB)))
    p('v_cmp_gt_u32 vcc, 8, v0')
    p('v_cndmask_b32 %s, %s, %s, vcc' % (vr(vPoll), vr(t1), vr(t0)))
    p('s_mul_i32 %s, %s, %d' % (sr(sC), sr(sM), 65536 - 8192))
    p('s_add_u32 %s, %s, %s' % (sr(sC), sr(sC), sr(sPS)))
    poll(['buffer_load_dword %s, %s, %s, %s offen sc1' % (vr(t0), vr(vPoll), sr(S_WS, 4), sr(sA))], [t0])
    vPa = V(56)
    for i in range(7):
        p('s_add_u32 %s, %s, %d' % (sr(sA), sr(sM), 7 - i))
        p('s_and_b32 %s, %s, 7' % (sr(sA), sr(sA)))
        p('s_lshl_b32 %s, %s, 13' % (sr(sA), sr(sA)))
        p('s_add_u32 %s, %s, %s' % (sr(sA), sr(sA), sr(sC)))
        for u in range(2):
            p('buffer_load_dwordx4 %s, %s, %s, %s offen offset:%d sc1' % (vr(vPa + 8 * i + 4 * u, 4), vr(vL16), sr(S_WS, 4), sr(sA), 1024 * u))
    p('s_lshl_b32 %s, %s, 6' % (sr(sA), sr(sT)))
    p('s_lshr_b32 %s, %s, 1' % (sr(sB), sr(sW)))
    p('s_lshl_b32 %s, %s, 5' % (sr(sB), sr(sB)))
    p('s_add_u32 %s, %s, %s' % (sr(sA), sr(sA), sr(sB)))
    p('v_and_b32 %s, 31, v0' % vr(t0))
    p('v_add_u32 %s, %s, %s' % (vr(t0), sr(sA), vr(t0)))
    p('v_lshlrev_b32 %s, 10, %s' % (vr(t0), vr(t0)))
    p('v_lshrrev_b32 %s, 5, v0' % vr(t1))
    p('v_lshl_add_u32 %s, %s, 4, %s' % (vr(t0), vr(t1), vr(t0)))
    p('s_lshl_b32 %s, %s, 7' % (sr(sA), sr(sM)))
    p('s_and_b32 %s, %s, 1' % (sr(sB), sr(sW)))
    p('s_lshl_b32 %s, %s, 6' % (sr(sB), sr(sB)))
    p('s_add_u32 %s, %s, %s' % (sr(sA), sr(sA), sr(sB)))
    for i in range(7):
        for u in range(2):
            mf32(vr(vH, 16), vr(vSel + 4 * u, 4), vr(vPa + 8 * i + 4 * u, 4), vr(vH, 16))
    for i in range(8):
        p('v_cvt_pk_bf16_f32 %s, %s, %s' % (vr(vPk + i), vr(vH + 2 * i), vr(vH + 2 * i + 1)))
    for u in range(2):
        p('v_permlane32_swap_b32 %s, %s' % (vr(vPk + 4 * u), vr(vPk + 4 * u + 2)))
        p('v_permlane32_swap_b32 %s, %s' % (vr(vPk + 4 * u + 1), vr(vPk + 4 * u + 3)))
        p('buffer_store_dwordx4 %s, %s, %s, %s offen offset:%d' % (vr(vPk + 4 * u, 4), vr(t0), sr(S_OUT, 4), sr(sA), 32 * u))
p('s_branch KFIN')

p.label('SAFE_SOFTMAX')
R = fb_regs


def fb_scores(qb):
    p('s_lshl_b32 %s, %s, 1' % (sr(sA), sr(sT)))
    p('s_add_u32 %s, %s, %d' % (sr(sA), sr(sA), qb))
    p('s_sub_u32 %s, %s, %s' % (sr(sA), sr(sA), sr(sE)))
    p('s_lshr_b32 %s, %s, 1' % (sr(sB), sr(sA)))
    p('s_sub_u32 %s, %s, %s' % (sr(sB), sr(sT), sr(sB)))
    p('s_mul_i32 %s, %s, %d' % (sr(sB), sr(sB), 32 * KVS))
    p('s_sub_u32 %s, %s, %s' % (sr(sB), sr(sKVO), sr(sB)))
    p('s_and_b32 %s, %s, 1' % (sr(sA), sr(sA)))
    p('s_lshl_b32 %s, %s, 10' % (sr(sC), sr(sA)))
    p('s_add_u32 %s, %s, %s' % (sr(sC), sr(sC), sr(sB)))
    p('s_mul_i32 %s, %s, 1280' % (sr(sA), sr(sA)))
    p('s_add_u32 %s, %s, %s' % (sr(sB), sr(sB), sr(sA)))
    p('buffer_load_dwordx4 %s, %s, %s, %s offen sc1' % (vr(R['K'], 4), vr(vL16), sr(S_WS, 4), sr(sC)))
    for u in range(2):
        p('buffer_load_dwordx4 %s, %s, %s, %s offen offset:%d sc1' % (vr(R['Vv'] + 4 * u, 4), vr(R['Vo']), sr(S_WS, 4), sr(sB), 2048 + 640 * u))
    mf32(vr(R['S'], 16), vr(R['K'], 4), vr(R['Q'] + 4 * qb, 4), '0')
    p('s_lshl_b32 %s, %s, 5' % (sr(sA), sr(sE)))
    p('v_add_u32 %s, %s, %s' % (vr(R['D']), sr(sA), vr(R['Qm'])))
    p('v_mov_b32 %s, 0xff800000' % vr(R['T'] + 1))
    for r in range(16):
        p('v_subrev_u32 %s, %d, %s' % (vr(R['T']), 8 * (r >> 2) + (r & 3), vr(R['D'])))
        p('v_cmp_gt_u32 vcc, 0x100, %s' % vr(R['T']))
        p('v_cndmask_b32 %s, %s, %s, vcc' % (vr(R['S'] + r), vr(R['T'] + 1), vr(R['S'] + r)))


for qb in range(2):
    p('s_lshl_b32 %s, %s, 1' % (sr(sG), sr(sT)))
    p('s_add_u32 %s, %s, %d' % (sr(sG), sr(sG), qb))
    p('s_min_u32 %s, %s, 8' % (sr(sG), sr(sG)))
    p('v_mov_b32 %s, 0xff800000' % vr(R['M']))
    p('s_mov_b32 %s, 0' % sr(sE))
    l1 = p.newlabel('fbmax')
    p.label(l1)
    fb_scores(qb)
    for r in range(16):
        p('v_max_f32 %s, %s, %s' % (vr(R['M']), vr(R['M']), vr(R['S'] + r)))
    p('s_add_u32 %s, %s, 1' % (sr(sE), sr(sE)))
    p('s_cmp_le_u32 %s, %s' % (sr(sE), sr(sG)))
    p('s_cbranch_scc1 %s' % l1)
    p('v_mov_b32 %s, %s' % (vr(R['T']), vr(R['M'])))
    p('v_permlane32_swap_b32 %s, %s' % (vr(R['T']), vr(R['M'])))
    p('v_max_f32 %s, %s, %s' % (vr(R['M']), vr(R['M']), vr(R['T'])))
    for r in range(16):
        p('v_mov_b32 %s, 0' % vr(R['O'][qb] + r))
    p('s_mov_b32 %s, 0' % sr(sE))
    l2 = p.newlabel('fbsum')
    p.label(l2)
    fb_scores(qb)
    for r in range(16):
        p('v_sub_f32 %s, %s, %s' % (vr(R['S'] + r), vr(R['S'] + r), vr(R['M'])))
        p('v_exp_f32 %s, %s' % (vr(R['S'] + r), vr(R['S'] + r)))
    for i in range(8):
        p('v_cvt_pk_bf16_f32 %s, %s, %s' % (vr(R['P'] + i), vr(R['S'] + 2 * i), vr(R['S'] + 2 * i + 1)))
    for u in range(2):
        mf32(vr(R['O'][qb], 16), vr(R['Vv'] + 4 * u, 4), vr(R['P'] + 4 * u, 4), vr(R['O'][qb], 16))
    p('s_add_u32 %s, %s, 1' % (sr(sE), sr(sE)))
    p('s_cmp_le_u32 %s, %s' % (sr(sE), sr(sG)))
    p('s_cbranch_scc1 %s' % l2)
p('s_branch SOFTMAX_DONE')
p.label('KFIN')
finish_kernel()

body = p.finish()
ref = open(os.path.join(os.path.dirname(os.path.abspath(__file__)), '..', 'cdna_kernels', NAME + '.s.ref')).read()
head = ''.join(l + '\n' for l in ref.split('\n') if l.startswith(';') and '@launch' not in l)
out = head + '; @launch grid=(256,1,1) block=(256,1,1) lds=163840\n'
out += '.amdgcn_target "amdgcn-amd-amdhsa--gfx950"\n.text\n.globl %s_kernel\n.p2align 8\n.type %s_kernel,@function\n%s_kernel:\n' % (NAME, NAME, NAME)
out += body
out += '''.section .rodata,"a"
.p2align 6
.amdhsa_kernel %s_kernel
  .amdhsa_next_free_vgpr 512
  .amdhsa_next_free_sgpr 102
  .amdhsa_accum_offset 256
  .amdhsa_group_segment_fixed_size 0
  .amdhsa_kernarg_size 88
  .amdhsa_user_sgpr_count 2
  .amdhsa_user_sgpr_kernarg_segment_ptr 1
  .amdhsa_system_sgpr_workgroup_id_x 1
.end_amdhsa_kernel
''' % NAME
dst = OPT.get('out') or os.path.join(os.path.dirname(os.path.abspath(__file__)), '..', 'cdna_kernels', NAME + '.s')
open(dst, 'w').write(out)
print('wrote', dst, 'instructions', sum(1 for x in p.ins if x.kind == 'ins'), 'nops', p.total_nops)
```
